```python
import torch

def _softmax(x, axis=-1):
    return torch.softmax(x, dim=axis)
def _gelu(x):
    return torch.nn.functional.gelu(x, approximate="tanh")
def _silu(x):
    return torch.nn.functional.silu(x)
def _sigmoid(x):
    return torch.sigmoid(x)
def _layernorm(x, axis=-1, eps=1e-5):
    m = x.mean(dim=axis, keepdim=True)
    v = x.var(dim=axis, keepdim=True, unbiased=False)
    return (x - m) / torch.sqrt(v + eps)
def _scatter_add(tgt, idx, src, axis=0):
    return tgt.clone().index_add_(axis, idx, src)
def _segment_sum(src, seg, n):
    out = torch.zeros((n,) + src.shape[1:], dtype=src.dtype)
    return out.index_add_(0, seg, src)
def _pad(x, pw):
    flat = tuple(v for pair in reversed(pw) for v in pair)
    return torch.nn.functional.pad(x, flat)

kernel_name = 'gated_mix__mha_block_cached__geglu_ffn__decode'

def setup_inputs():

    _w = (lambda a: (lambda t: t.to(torch.bfloat16) if t.is_floating_point() else t)(torch.as_tensor(a)))
    def _A_setup():
        B, Sq, D = 8, 1, 1024
        H, Sk, Dh = 32, 4096, 128
        return {
            "x": _w((lambda *s: torch.randn(*s, dtype=torch.bfloat16) * 0.05)(B, Sq, D)),
            "k_cache": _w((lambda *s: torch.randn(*s, dtype=torch.bfloat16) * 6.4)(B, H, Sk, Dh)),
            "v_cache": _w((lambda *s: torch.randn(*s, dtype=torch.bfloat16) * 0.4)(B, H, Sk, Dh)),
            "wq": _w((lambda *s: torch.randn(*s, dtype=torch.bfloat16) * 6.4)(D, H * Dh) * (D ** -0.5)),
            "wo": _w((lambda *s: torch.randn(*s, dtype=torch.bfloat16) * 0.4)(H * Dh, D) * ((H * Dh) ** -0.5)),
        }
    _A_in = _A_setup()

    def _B_setup():
        B, S, D, F = 8, 1, 1024, 3584
        return {
            "x": _w((lambda *s: torch.randn(*s, dtype=torch.bfloat16) * 0.05)(B, S, D)),
            "w_gate": _w((lambda *s: torch.randn(*s, dtype=torch.bfloat16) * 0.05)(D, F)),
            "w_up": _w((lambda *s: torch.randn(*s, dtype=torch.bfloat16) * 0.05)(D, F)),
            "w_down": _w((lambda *s: torch.randn(*s, dtype=torch.bfloat16) * 0.05)(F, D)),
        }
    _B_in = _B_setup()

    return {
        "A_x": _A_in["x"],
        "A_k_cache": _A_in["k_cache"],
        "A_v_cache": _A_in["v_cache"],
        "A_wq": _A_in["wq"],
        "A_wo": _A_in["wo"],
        "B_x": _B_in["x"],
        "B_w_gate": _B_in["w_gate"],
        "B_w_up": _B_in["w_up"],
        "B_w_down": _B_in["w_down"],
        "gate_w": _w((lambda *s: torch.randn(*s, dtype=torch.bfloat16) * 0.05)(1024) * 16.0),
    }

def reference(A_x, A_k_cache, A_v_cache, A_wq, A_wo, B_x, B_w_gate, B_w_up, B_w_down, gate_w):
    def _A_ref(x, k_cache, v_cache, wq, wo):
        B, Sq, D = x.shape
        H, Dh = 32, 128
        q = (lambda x, *d: x.permute(*d))((x @ wq).reshape(B, Sq, H, Dh), 0, 2, 1, 3)
        scores = torch.einsum("bhqd,bhkd->bhqk", q, k_cache) * (Dh ** -0.5)
        p = _softmax(scores, axis=-1)
        o = torch.einsum("bhqk,bhkd->bhqd", p, v_cache)
        return (lambda x, *d: x.permute(*d))(o, 0, 2, 1, 3).reshape(B, Sq, H * Dh) @ wo

    def _B_ref(x, w_gate, w_up, w_down):
        return (_gelu(x @ w_gate) * (x @ w_up)) @ w_down

    x = A_x
    g = _sigmoid((x * gate_w).sum(-1, keepdims=True))
    a = _A_ref(x, A_k_cache, A_v_cache, A_wq, A_wo)
    b = _B_ref(x, B_w_gate, B_w_up, B_w_down)
    return g * a + (1 - g) * b
```

```python
import re

TRANS = ("v_exp_f32", "v_log_f32", "v_rcp_f32", "v_rsq_f32", "v_sqrt_f32", "v_sin_f32", "v_cos_f32")


def _regs(tok):
    tok = tok.strip()
    tok = re.sub(r"^-", "", tok)
    m = re.match(r"^abs\((.*)\)$", tok)
    if m:
        tok = m.group(1)
    m = re.match(r"^([vsa])\[(\d+):(\d+)\]$", tok)
    if m:
        return [f"{m.group(1)}{i}" for i in range(int(m.group(2)), int(m.group(3)) + 1)]
    m = re.match(r"^([vsa])(\d+)$", tok)
    if m:
        return [tok]
    if tok in ("vcc", "vcc_lo", "vcc_hi"):
        return ["vcc"]
    if tok in ("exec", "exec_lo", "exec_hi"):
        return ["exec"]
    if tok == "m0":
        return ["m0"]
    return []


class Emitter:
    def __init__(self):
        self.lines = []
        self.t = 0
        self.lastw = {}
        self.storedata = {}
        self.mfma_c = {}
        self.vm = []

    def raw(self, text):
        self.lines.append(text)

    def label(self, name):
        self.lines.append(f"{name}:")

    def comment(self, text):
        self.lines.append(f"    ; {text}")

    def nop(self, n):
        while n > 0:
            k = min(n, 16)
            self.lines.append(f"    s_nop {k-1}")
            self.t += k
            n -= k

    def fence(self, n=12):
        self.nop(n)

    def I(self, text, tag=None):
        text = text.strip()
        m = re.match(r"^(\S+)\s*(.*)$", text)
        op, rest = m.group(1), m.group(2)
        ops = [o.strip() for o in rest.split(",")] if rest else []
        mods = ""
        fixed = []
        for o in ops:
            if fixed and fixed[-1].count("[") > fixed[-1].count("]"):
                fixed[-1] += "," + o
            else:
                fixed.append(o)
        ops = fixed
        if ops:
            parts = ops[-1].split(None, 1)
            ops[-1] = parts[0]
            mods = parts[1] if len(parts) > 1 else ""
        w, r = [], []
        kind = "salu"
        need = 0
        is_dpp = "_dpp" in op or "row_" in mods or "quad_perm" in mods
        if op.startswith("v_mfma"):
            kind = "mfma"
            w = _regs(ops[0]); ra = _regs(ops[1]) + _regs(ops[2]); rc = _regs(ops[3]); r = ra + rc
            for x in ra:
                lw = self.lastw.get(x)
                if lw:
                    if lw[1] == "mfma": need = max(need, lw[0] + 8 + 1 - self.t - 0)
                    elif lw[1] in ("valu", "trans", "dot"): need = max(need, lw[0] + 3 - self.t if lw[1] != "dot" else lw[0] + 4 - self.t)
            for x in rc:
                lw = self.lastw.get(x)
                if lw:
                    if lw[1] == "mfma":
                        if lw[2] != tuple(rc): need = max(need, lw[0] + 7 - self.t)
                    elif lw[1] in ("valu", "trans", "dot"): need = max(need, lw[0] + 3 - self.t if lw[1] != "dot" else lw[0] + 4 - self.t)
            for x in w:
                lw = self.lastw.get(x)
                if lw and lw[1] == "mfma" and lw[2] != tuple(w): need = max(need, lw[0] + 9 - self.t)
        elif op.startswith("v_"):
            kind = "valu"
            base = op.replace("_e32", "").replace("_e64", "").replace("_dpp", "")
            if base in TRANS: kind = "trans"
            if base.startswith("v_dot2"): kind = "dot"
            if base.startswith("v_cmp"):
                w = _regs(ops[0]); r = sum((_regs(o) for o in ops[1:]), [])
            elif base.startswith("v_permlane"):
                w = _regs(ops[0]) + _regs(ops[1]); r = list(w)
            elif base in ("v_add_co_u32", "v_addc_co_u32", "v_sub_co_u32"):
                w = _regs(ops[0]) + _regs(ops[1]); r = sum((_regs(o) for o in ops[2:]), [])
            else:
                w = _regs(ops[0]); r = sum((_regs(o) for o in ops[1:]), [])
                if base in ("v_fmac_f32", "v_dot2c_f32_bf16") or is_dpp: r += w
            for i, x in enumerate(r):
                lw = self.lastw.get(x)
                if not lw: continue
                lt, lk = lw[0], lw[1]
                if lk == "mfma": need = max(need, lt + 9 - self.t)
                elif lk == "dot":
                    same_c = kind == "dot" and lw[2] == base and (x in (_regs(ops[3]) if len(ops) > 3 else w)) and x not in (_regs(ops[1]) + _regs(ops[2]))
                    if not same_c: need = max(need, lt + 4 - self.t)
                if lk in ("valu", "trans", "dot") and x[0] == "v" and x != "vcc":
                    if is_dpp and x in _regs(ops[1]): need = max(need, lt + 3 - self.t)
                    if base.startswith("v_permlane"): need = max(need, lt + 3 - self.t)
                    if base in ("v_readlane_b32", "v_readfirstlane_b32"): need = max(need, lt + 2 - self.t)
                    if lk == "trans" and kind != "trans": need = max(need, lt + 2 - self.t)
                if lk in ("valu", "trans", "dot") and (x[0] == "s" or x == "vcc"):
                    need = max(need, lt + 3 - self.t)
                    if base in ("v_readlane_b32", "v_writelane_b32"): need = max(need, lt + 5 - self.t)
            for x in w:
                lw = self.lastw.get(x)
                if lw and lw[1] == "mfma": need = max(need, lw[0] + 9 - self.t)
                if lw and lw[1] == "dot" and not (kind == "dot" and lw[2] == base): need = max(need, lw[0] + 4 - self.t)
                if x in self.storedata: need = max(need, self.storedata[x] + 3 - self.t)
                if x in self.mfma_c: need = max(need, self.mfma_c[x] + 4 - self.t)
        elif op.startswith("buffer_") or op.startswith("global_") or op.startswith("ds_"):
            kind = "mem"
            is_lds_dma = re.search(r"\blds\b", mods) is not None
            if op.startswith("buffer_load") and not is_lds_dma:
                w = _regs(ops[0]); r = sum((_regs(o) for o in ops[1:]), [])
            elif op.startswith("ds_read") or op.startswith("ds_bpermute") or op.startswith("ds_swizzle"):
                w = _regs(ops[0]); r = sum((_regs(o) for o in ops[1:]), [])
            elif op.startswith("buffer_atomic") and "sc0" in mods:
                w = _regs(ops[0]); r = sum((_regs(o) for o in ops), [])
            else:
                r = sum((_regs(o) for o in ops), [])
            if is_lds_dma:
                lw = self.lastw.get("m0")
                if lw: need = max(need, lw[0] + 2 - self.t)
            for x in r + w:
                lw = self.lastw.get(x)
                if not lw: continue
                if lw[1] == "mfma": need = max(need, lw[0] + 9 - self.t)
                if lw[1] == "dot": need = max(need, lw[0] + 4 - self.t)
                if lw[1] in ("valu", "trans", "dot") and x[0] == "s": need = max(need, lw[0] + 6 - self.t)
                if lw[1] == "trans": need = max(need, lw[0] + 2 - self.t)
            for x in w:
                if x in self.storedata: need = max(need, self.storedata[x] + 2 - self.t)
        else:
            kind = "salu"
            if op.startswith("s_") and ops and not op.startswith(("s_cmp", "s_cbranch", "s_branch", "s_waitcnt", "s_nop", "s_barrier", "s_sleep", "s_endpgm", "s_setprio")):
                w = _regs(ops[0]); r = sum((_regs(o) for o in ops[1:]), [])
            elif op.startswith("s_cmp"):
                r = sum((_regs(o) for o in ops), [])
            for x in r:
                lw = self.lastw.get(x)
                if lw and lw[1] in ("valu", "trans") : need = max(need, lw[0] + 2 - self.t)
        if need > 0:
            self.nop(need)
        self.lines.append("    " + text)
        for x in w:
            extra = None
            if kind == "mfma": extra = tuple(w)
            if kind == "dot": extra = op.replace("_e32", "").replace("_e64", "")
            self.lastw[x] = (self.t, kind, extra)
        if kind == "mfma":
            for x in _regs(ops[3]): self.mfma_c[x] = self.t
        if kind == "mem" and ("store_dwordx4" in op or "store_dwordx3" in op):
            for x in _regs(ops[0]): self.storedata[x] = self.t
        if op == "s_nop":
            self.t += int(ops[0]) + 1
        else:
            self.t += 1
        if op.startswith("buffer_") or op.startswith("global_"):
            self.vm.append(tag if tag is not None else f"_anon{self.t}")

    def wait_vm(self, tag):
        if tag not in self.vm:
            return
        idx = self.vm.index(tag)
        n = len(self.vm) - 1 - idx
        n = min(n, 63)
        self.I(f"s_waitcnt vmcnt({n})")
        self.vm = self.vm[idx + 1:]

    def wait_vm_all(self):
        self.I("s_waitcnt vmcnt(0)")
        self.vm = []

    def text(self):
        return "\n".join(self.lines) + "\n"
```

```python
import sys
from asmlib import Emitter

KNAME = "gated_mix__mha_block_cached__geglu_ffn__decode_kernel"

WS_E = 0
WS_QP = 1 << 20
WS_GP = 2 << 20
WS_UP = 3 << 20
WS_AP = 4 << 20
WS_BP = 5 << 20
WS_HID = 6 << 20
WS_OG = 7 << 20
WS_OG2 = 8 << 20
WS_STAMP = 14 << 20
WS_SIZE = 16 << 20
L_P0 = 0
L_P1 = 32768
L_P2 = 65536
L_Q = 98304
L_FLAG = 98304 + 256
L_CNT = 98304 + 260
L_LAST = 98304 + 264
L_PROG = 98304 + 268
L_DSEL = 98304 + 272
L_SCNT = 98304 + 276
L_DSEL2 = 98304 + 280
L_PR2 = 98304 + 284
L_DONE = 98304 + 288
L_OGF = 98304 + 292
L_ML = 98304 + 512
L_PART = 98304 + 1024
L_OL = 98304 + 1024 + 4096
L_HL = L_OL + 4608
L_SC = L_HL + 4608
L_P3 = L_SC + 16384
LDS_BYTES = L_SC + 16384

EPOCH_INC = 0x9E3779B9
POLL_LIMIT = 200000


def gen(path, D=5, stamps=False, kvflags="nt", wflags="nt", sleep_poll=1, DF=5, GF=12, slow_poll=64, tail_poll=1,
        noaux=False, header=None, hid_delay=0, noweights=False, nostore=False, nopoll=False, noreads=False, nodown=False, rfl='sc1', sfl='sc1', xfl='', q_delay=0, defer_bp=False, sched=None, e_off=0, ctl=None, ngrp=8, WQF=32, offs=(6, 0, 1, 7, 4), gu_delay=0, rot=0, early=False, pat='a', midstamp=False, rk=None, DHI=7, DLO=4, cps=None, modes=(5, 6, 4, 7), ksched=None, DHI2=7, early_down=False, GD=None, DF1=None, n1=0, rk2=None, n_st1=4, rapid=0, rsl=6, l2fast=0, l2fl='sc1', late_down=False, last_early=0, bars=True, ofl=''):
    e = Emitter()
    I = e.I
    nst = [0]

    def stamp():
        if stamps:
            k = nst[0]; nst[0] += 1
            assert k < 12
            I(f"s_memrealtime s[{76+2*k}:{77+2*k}]")

    def stamp_flush():
        if not stamps: return
        I("s_waitcnt lgkmcnt(0)")
        I("v_mov_b32 v1, 0")
        for k in range(nst[0]):
            I(f"v_writelane_b32 v1, s{76+2*k}, {k}")
        I("s_getreg_b32 s70, hwreg(HW_REG_XCC_ID)")
        I("v_writelane_b32 v1, s70, 15")
        I("s_getreg_b32 s70, hwreg(HW_REG_HW_ID)")
        I("v_writelane_b32 v1, s70, 14")
        I("s_lshl_b32 s70, s2, 3"); I("s_add_u32 s70, s70, s3"); I("s_lshl_b32 s70, s70, 6"); I(f"s_add_u32 s70, s70, {WS_STAMP}")
        I("v_mbcnt_lo_u32_b32 v2, -1, 0"); I("v_mbcnt_hi_u32_b32 v2, -1, v2"); I("v_lshlrev_b32 v2, 2, v2")
        I("s_mov_b64 exec, 0xffff")
        I("buffer_store_dword v1, v2, s[36:39], s70 offen")
        nst[0] = 0

    def srd(dst, ptr, size):
        I(f"s_mov_b32 s{dst}, s{ptr}"); I(f"s_and_b32 s{dst+1}, s{ptr+1}, 0xffff")
        I(f"s_mov_b32 s{dst+2}, {size}"); I(f"s_mov_b32 s{dst+3}, 0x20000")

    def load_epoch(v):
        I(f"buffer_load_dword v{v}, off, s[36:39], 0 offset:{e_off} {rfl}", tag="E")

    def get_epoch(v):
        e.wait_vm("E")
        I(f"v_readfirstlane_b32 s56, v{v}")
        I(f"s_add_u32 s56, s56, {EPOCH_INC}")
        I("s_mov_b32 s72, s56"); I("s_lshr_b32 s73, s56, 8"); I("s_lshr_b32 s74, s56, 16"); I("s_lshr_b32 s75, s56, 24")

    def p_voffsets(vo, stride, t1, t2):
        I(f"v_bfe_u32 v{t1}, v0, 4, 1"); I(f"v_lshlrev_b32 v{t1}, 1, v{t1}")
        I(f"v_and_b32 v{t2}, 7, v0"); I(f"v_xor_b32 v{t2}, v{t1}, v{t2}"); I(f"v_lshlrev_b32 v{t2}, 4, v{t2}")
        I(f"v_lshrrev_b32 v{t1}, 3, v0"); I(f"s_mov_b32 s57, {stride}"); I(f"v_mul_lo_u32 v{t1}, v{t1}, s57")
        I(f"v_add_u32 v{vo}, v{t1}, v{t2}")
        I(f"v_xor_b32 v{t2}, 64, v{t2}")
        I(f"v_add_u32 v{vo+1}, v{t1}, v{t2}")

    def p_dma(ts, vo, srdn, sbase, stride, ldsbase, tagp):
        for t in ts:
            if noweights or (nodown and tagp == "WD"):
                e.vm.append(f"{tagp}{t}"); continue
            I(f"s_mov_b32 m0, {ldsbase + t*1024}")
            I(f"s_add_u32 s57, s{sbase}, {t*8*stride}")
            I(f"buffer_load_dwordx4 v{vo + (t&1)}, s[{srdn}:{srdn+3}], s57 offen {wflags} lds", tag=f"{tagp}{t}")

    def p_trbase(vtr, t1, t2, ldsbase):
        I(f"v_lshrrev_b32 v{t1}, 4, v0"); I(f"v_bfe_u32 v{t2}, v0, 2, 2")
        I(f"v_lshl_add_u32 v{vtr}, v{t1}, 3, v{t2}"); I(f"v_lshlrev_b32 v{vtr}, 7, v{vtr}")
        I(f"v_bfe_u32 v{t1}, v0, 3, 2")
        I(f"v_lshl_add_u32 v{vtr}, v{t1}, 5, v{vtr}")
        I(f"v_and_b32 v{t1}, 3, v0"); I(f"v_lshl_add_u32 v{vtr}, v{t1}, 3, v{vtr}")
        if ldsbase: I(f"v_add_u32 v{vtr}, {ldsbase}, v{vtr}")

    def p_reads(vaddr, F, kss):
        for q, ks in enumerate(kss):
            for hf in range(2):
                r = F + q * 4 + hf * 2
                I(f"ds_read_b64_tr_b16 v[{r}:{r+1}], v{vaddr} offset:{ks*4096 + hf*512}")

    def tag_words(S, srcs, t, vmask):
        for r in range(4):
            I(f"v_add_u32 v{t}, 0x80, v{srcs[r]}")
            I(f"v_bfi_b32 v{S+r}, v{vmask}, v{t}, s{72+r}")

    def p_gemm_full(vtr, vad, F0, F1, Dd, X, xstride, tagp, S, vmask, t, vst, soff, defer=False):
        F = [F0, F1]
        batches = [(hf, ct) for hf in range(2) for ct in range(4)]

        def reads(n):
            hf, ct = batches[n]
            if tagp and ct == 0: e.wait_vm(f"{tagp}{16*hf+15}")
            I(f"v_xor_b32 v{vad}, {ct<<5}, v{vtr}")
            p_reads(vad, F[n & 1], range(4 * hf, 4 * hf + 4))
        reads(0)
        for n in range(8):
            hf, ct = batches[n]
            I("s_waitcnt lgkmcnt(0)")
            if n + 1 < 8: reads(n + 1)
            d = Dd + 4 * ct
            for q in range(4):
                ks = 4 * hf + q
                c = "0" if ks == 0 else f"v[{d}:{d+3}]"
                f = F[n & 1] + q * 4
                x = X + ks * xstride
                I(f"v_mfma_f32_16x16x32_bf16 v[{d}:{d+3}], v[{f}:{f+3}], v[{x}:{x+3}], {c}")
        for p in range(2):
            a, b = Dd + 8 * p, Dd + 8 * p + 4
            for r in range(4):
                I(f"v_cndmask_b32 v{a+r}, v{a+r}, v{b+r}, s[60:61]")
            tag_words(S + 4 * p, [a + r for r in range(4)], t, vmask)
            if not nostore and not defer: I(f"buffer_store_dwordx4 v[{S+4*p}:{S+4*p+3}], v{vst}, s[36:39], s{soff} offen offset:{p*128} {sfl}")
        if defer:
            I(f"v_mov_b32 v{t}, {L_LAST}")
            I(f"s_mov_b32 s58, {POLL_LIMIT*16}")
            e.label("L_lwait")
            I(f"ds_read_b32 v{t+1}, v{t}")
            I("s_waitcnt lgkmcnt(0)")
            I(f"v_readfirstlane_b32 s57, v{t+1}")
            I("s_cmp_lg_u32 s57, 0"); I("s_cbranch_scc1 L_lok")
            I("s_sub_u32 s58, s58, 1"); I("s_cmp_eq_u32 s58, 0"); I("s_cbranch_scc1 L_lok")
            I("s_sleep 8"); I("s_branch L_lwait")
            e.label("L_lok")
            for p in range(2):
                I(f"buffer_store_dwordx4 v[{S+4*p}:{S+4*p+3}], v{vst}, s[36:39], s{soff} offen offset:{p*128} {sfl}")

    def two_tile_voff(vst, t1, bstride_log2):
        I(f"v_and_b32 v{vst}, 7, v0"); I(f"v_lshlrev_b32 v{vst}, {bstride_log2}, v{vst}")
        I(f"v_bfe_u32 v{t1}, v0, 3, 1"); I(f"v_lshl_add_u32 v{vst}, v{t1}, 6, v{vst}")
        I(f"v_lshrrev_b32 v{t1}, 4, v0"); I(f"v_lshl_add_u32 v{vst}, v{t1}, 4, v{vst}")

    pollid = [0]

    def poll(loads, quads, kind, t1, t2, slp, masks=None, preloaded=False, to_rapid=None, lim=None, keep=False, exit_masks=None):
        k = pollid[0]; pollid[0] += 1
        I(f"s_mov_b32 s58, {1 if nopoll else (lim or POLL_LIMIT)}")
        if masks and not keep:
            for m in masks: I(f"s_mov_b64 s[{m}:{m+1}], {0 if preloaded else -1}")
        e.label(f"L_poll{k}")
        for i, ld in enumerate(loads):
            if masks:
                I(f"s_mov_b64 exec, s[{masks[i]}:{masks[i]+1}]")
                I(f"s_cbranch_execz L_pskip{k}_{i}")
            if not noreads: ld()
            if masks: e.label(f"L_pskip{k}_{i}")
        if masks: I("s_mov_b64 exec, -1")
        e.wait_vm_all()
        for i, q in enumerate(quads):
            if kind == "g8":
                I(f"v_xor_b32 v{t1}, s56, v{q+1}"); I(f"v_xor_b32 v{t2}, s56, v{q+3}")
                if masks or i == 0: I(f"v_or_b32 v{t1+2}, v{t1}, v{t2}")
                else: I(f"v_or3_b32 v{t1+2}, v{t1+2}, v{t1}, v{t2}")
            else:
                I(f"v_xor_b32 v{t1}, s72, v{q}"); I(f"v_xor_b32 v{t2}, s73, v{q+1}")
                if masks or i == 0: I(f"v_or_b32 v{t1+2}, v{t1}, v{t2}")
                else: I(f"v_or3_b32 v{t1+2}, v{t1+2}, v{t1}, v{t2}")
                I(f"v_xor_b32 v{t1}, s74, v{q+2}"); I(f"v_xor_b32 v{t2}, s75, v{q+3}")
                I(f"v_or3_b32 v{t1+2}, v{t1+2}, v{t1}, v{t2}")
                if masks: I(f"v_and_b32 v{t1+2}, 0xff, v{t1+2}")
            if masks:
                m = masks[i]
                I(f"v_cmp_ne_u32 s[{m}:{m+1}], 0, v{t1+2}")
        if masks:
            xm = exit_masks or masks
            I(f"s_mov_b64 s[66:67], s[{xm[0]}:{xm[0]+1}]")
            for m in xm[1:]: I(f"s_or_b64 s[66:67], s[66:67], s[{m}:{m+1}]")
            I("s_cmp_eq_u64 s[66:67], 0"); I(f"s_cbranch_scc1 L_pdone{k}")
            if to_rapid:
                I("s_bcnt1_i32_b64 s57, s[66:67]")
                for m in masks:
                    I(f"s_bcnt1_i32_b64 s35, s[{m}:{m+1}]"); I("s_sub_u32 s57, s57, s35")
                I("s_cmp_eq_u32 s57, 0"); I(f"s_cbranch_scc1 {to_rapid}")
        else:
            if kind == "m": I(f"v_and_b32 v{t1+2}, 0xff, v{t1+2}")
            I(f"v_cmp_ne_u32 vcc, 0, v{t1+2}")
            I("s_cmp_eq_u64 vcc, 0"); I(f"s_cbranch_scc1 L_pdone{k}")
        I("s_sub_u32 s58, s58, 1"); I("s_cmp_eq_u32 s58, 0"); I(f"s_cbranch_scc1 L_pdone{k}")
        sl = slp
        while sl > 0:
            I(f"s_sleep {min(sl,127)}"); sl -= 127
        I(f"s_branch L_poll{k}")
        e.label(f"L_pdone{k}")

    def rapid_poll(lbl, masks, deltas, vbase, soff, kind, X, Y, vad, t1, t2):
        I(f"v_mov_b32 v{vad}, v{vbase}")
        for m, d in zip(masks[1:], deltas[1:]):
            I(f"v_add_u32 v{t1}, {d}, v{vbase}"); I(f"v_cndmask_b32 v{vad}, v{vad}, v{t1}, s[{m}:{m+1}]")
        I("s_mov_b64 exec, s[66:67]")
        for i in range(rapid):
            if i: I(f"s_sleep {rsl}")
            I(f"buffer_load_dwordx4 v[{X+4*i}:{X+4*i+3}], v{vad}, s[36:39], s{soff} offen {rfl}")
        I(f"s_mov_b32 s58, {POLL_LIMIT}")
        e.label(f"L_{lbl}_loop")
        for i in range(rapid):
            q = X + 4 * i
            I(f"s_waitcnt vmcnt({rapid-1})")
            if kind == "g8":
                I(f"v_xor_b32 v{t1}, s56, v{q+1}"); I(f"v_xor_b32 v{t2}, s56, v{q+3}"); I(f"v_or_b32 v{t1}, v{t1}, v{t2}")
            else:
                I(f"v_xor_b32 v{t1}, s72, v{q}"); I(f"v_xor_b32 v{t2}, s73, v{q+1}"); I(f"v_or_b32 v{t1+2}, v{t1}, v{t2}")
                I(f"v_xor_b32 v{t1}, s74, v{q+2}"); I(f"v_xor_b32 v{t2}, s75, v{q+3}"); I(f"v_or3_b32 v{t1}, v{t1+2}, v{t1}, v{t2}")
                I(f"v_and_b32 v{t1}, 0xff, v{t1}")
            I(f"v_cmp_ne_u32 vcc, 0, v{t1}")
            I("s_cmp_eq_u64 vcc, 0"); I(f"s_cbranch_scc1 L_{lbl}_ok{i}")
            I(f"buffer_load_dwordx4 v[{q}:{q+3}], v{vad}, s[36:39], s{soff} offen {rfl}")
        I("s_sub_u32 s58, s58, 1"); I("s_cmp_lg_u32 s58, 0"); I(f"s_cbranch_scc1 L_{lbl}_loop")
        for i in range(rapid):
            e.label(f"L_{lbl}_ok{i}")
            for r in range(4): I(f"v_mov_b32 v{Y+r}, v{X+4*i+r}")
            if i + 1 < rapid: I(f"s_branch L_{lbl}_got")
        e.label(f"L_{lbl}_got")
        e.vm = []

    def bf16_round(dst, src):
        I(f"v_cvt_pk_bf16_f32 v{dst}, v{src}, v{src}")
        I(f"v_lshlrev_b32 v{dst}, 16, v{dst}")

    def swapadd(op, v, t, which):
        I(f"v_mov_b32 v{t}, v{v}"); I(f"v_permlane{which}_swap_b32 v{v}, v{t}"); I(f"{op} v{v}, v{v}, v{t}")

    def allreduce64(op, v, t):
        for r in (8, 4, 2, 1):
            I(f"{op}_dpp v{v}, v{v}, v{v} row_ror:{r} row_mask:0xf bank_mask:0xf")
        swapadd(op, v, t, 16); swapadd(op, v, t, 32)

    def xfrag_loads(X, vx, t1, srdn):
        I(f"v_and_b32 v{vx}, 7, v0"); I(f"v_lshlrev_b32 v{vx}, 11, v{vx}")
        I(f"v_lshrrev_b32 v{t1}, 4, v0"); I(f"v_lshl_add_u32 v{vx}, v{t1}, 4, v{vx}")
        I("s_lshl_b32 s57, s7, 9")
        for ks in range(8):
            I(f"buffer_load_dwordx4 v[{X+4*ks}:{X+4*ks+3}], v{vx}, s[{srdn}:{srdn+3}], s57 offen offset:{ks*64} {xfl}", tag=f"X{ks}")

    def front_map(ffn, off):
        n = 28 if ffn else 32
        I("s_and_b32 s57, s2, 7"); I("s_lshr_b32 s58, s2, 3")
        I(f"s_add_u32 s59, s58, {off}"); I(f"s_sub_u32 s6, s59, {n}"); I(f"s_cmp_ge_u32 s59, {n}"); I("s_cselect_b32 s59, s6, s59")
        I("s_lshr_b32 s7, s57, 1"); I("s_and_b32 s6, s57, 1"); I(f"s_mul_i32 s6, s6, {n}"); I("s_add_u32 s6, s6, s59")
        if ffn:
            I("s_lshl_b32 s57, s57, 2"); I("s_add_u32 s57, s57, s58"); I("s_sub_u32 s57, s57, 28")
            I("s_and_b32 s59, s57, 7"); I("s_add_u32 s59, s59, 56"); I("s_lshr_b32 s57, s57, 3")
            I("s_cmp_lt_u32 s58, 28"); I("s_cselect_b32 s6, s6, s59"); I("s_cselect_b32 s7, s7, s57")
            I("s_cselect_b32 s46, s46, 0"); I("s_cselect_b32 s50, s50, 0")

    def front_bases(stride, sb=59, sp=69):
        I(f"s_mul_i32 s{sb}, s7, {256*stride}"); I("s_lshl_b32 s57, s6, 7"); I(f"s_add_u32 s{sb}, s{sb}, s57")
        I(f"s_lshl_b32 s{sp}, s7, 9"); I("s_lshr_b32 s57, s6, 1"); I("s_lshl_b32 s57, s57, 14"); I(f"s_add_u32 s{sp}, s{sp}, s57")
        I("s_and_b32 s57, s6, 1"); I("s_lshl_b32 s57, s57, 8"); I(f"s_add_u32 s{sp}, s{sp}, s57")

    def tail_map(ffn):
        I("s_and_b32 s57, s2, 7"); I("s_lshr_b32 s58, s2, 3")
        if not ffn:
            I("s_lshl_b32 s6, s57, 1"); I("s_lshr_b32 s57, s58, 4"); I("s_add_u32 s6, s6, s57")
            I(f"s_add_u32 s7, s58, {offs[3]}"); I("s_and_b32 s7, s7, 15")
        else:
            I("s_lshl_b32 s6, s57, 2"); I("s_add_u32 s6, s6, s58"); I("s_add_u32 s6, s6, 196")
            I("s_mul_i32 s57, s57, 28"); I("s_add_u32 s57, s57, s58"); I(f"s_add_u32 s57, s57, {offs[4]}")
            I("s_sub_u32 s7, s57, 224"); I("s_cmp_ge_u32 s57, 224"); I("s_cselect_b32 s57, s7, s57")
            I("s_cmp_lt_u32 s58, 28"); I("s_cselect_b32 s57, s57, s6")
            I("s_lshr_b32 s6, s57, 4"); I("s_and_b32 s7, s57, 15")

    def tail_bases(sw, sp):
        I(f"s_lshl_b32 s{sw}, s6, 19"); I(f"s_lshl_b32 s{sp}, s6, 11")
        I("s_lshl_b32 s58, s7, 7"); I(f"s_add_u32 s{sw}, s{sw}, s58")
        I("s_lshl_b32 s58, s7, 15"); I(f"s_add_u32 s{sp}, s{sp}, s58")

    def sum4_partials(R, t):
        for r in range(8): I(f"v_and_b32 v{R+r}, 0xffffff00, v{R+r}")
        for r in range(4): I(f"v_add_f32 v{R+r}, v{R+r}, v{R+4+r}")
        for r in range(4): swapadd("v_add_f32", R + r, t, 32)

    if header: e.raw(header.rstrip("\n"))
    e.raw(f"; @launch grid=(256,1,1) block=(384,1,1) lds={LDS_BYTES + (32768 if early_down and not late_down else 0)}")
    e.raw('.amdgcn_target "amdgcn-amd-amdhsa--gfx950"')
    e.raw(".text"); e.raw(f".globl {KNAME}"); e.raw(".p2align 8"); e.raw(f".type {KNAME},@function"); e.raw(f"{KNAME}:")
    I("s_cmp_ge_u32 s2, 256"); I("s_cbranch_scc1 L_end")
    I("s_load_dwordx16 s[8:23], s[0:1], 0")
    I("s_load_dwordx8 s[24:31], s[0:1], 64")
    I("s_load_dwordx2 s[32:33], s[0:1], 96")
    if stamps: I("s_memrealtime s[76:77]")
    nst[0] = 1
    I("v_lshrrev_b32 v1, 6, v0")
    I("v_readfirstlane_b32 s3, v1")
    I("v_and_b32 v0, 63, v0")
    I("s_lshr_b32 s4, s2, 5"); I("s_and_b32 s5, s2, 31")
    I("s_mov_b32 s60, 0xff00ff00"); I("s_mov_b32 s61, 0xff00ff00")
    I("s_mov_b32 s62, 0xcccccccc"); I("s_mov_b32 s63, 0xcccccccc")
    I("s_mov_b32 s64, 0xaaaaaaaa"); I("s_mov_b32 s65, 0xaaaaaaaa")
    I("s_mov_b32 s68, 0x3fb8aa3b")
    I("s_waitcnt lgkmcnt(0)")
    srd(36, 32, WS_SIZE)
    if noaux:
        I("s_cmp_ge_u32 s3, 4"); I("s_cbranch_scc1 L_end")
    I("s_cmp_eq_u32 s3, 4"); I("s_cbranch_scc1 L_aux0")
    I("s_cmp_eq_u32 s3, 5"); I("s_cbranch_scc1 L_aux1")

    RING = 48
    SP = 32
    vM, vL, vP, T0, T1, T2 = 2, 3, 4, 5, 6, 7
    vD, vQ, vSEL, vA0, vA1, vS = 8, 12, 16, 20, 24, 28
    T3, T4 = 29, 30
    vE = 31
    VO, VTR, VOL, VST, VMASK, VSC, vS2 = 176, 178, 179, 180, 181, 182, 183
    srd(40, 10, 1 << 28); srd(44, 12, 1 << 28)
    I("v_lshlrev_b32 v1, 4, v0")
    wsh = {'a': 10, 'b': 12, 'f': 13}[pat]
    joff = {'a': lambda j: j * 4096, 'b': lambda j: (j >> 2) * 16384 + (j & 3) * 1024, 'f': lambda j: (j >> 3) * 32768 + (j & 7) * 1024}[pat]
    I("s_lshl_b32 s34, s2, 20"); I(f"s_lshl_b32 s57, s3, {wsh}"); I("s_add_u32 s34, s34, s57")
    I("s_mov_b32 s69, s34")
    load_epoch(vE)

    def kv_issue(n, srdn):
        slot = RING + 4 * n
        off = joff(n)
        hi, lo = off & ~4095, off & 4095
        if hi == 0:
            so = "s69"
        else:
            if lo == 0 or n == 0 or (joff(n - 1) & ~4095) != hi: I(f"s_add_u32 s57, s69, {hi}")
            so = "s57"
        I(f"buffer_load_dwordx4 v[{slot}:{slot+3}], v1, s[{srdn}:{srdn+3}], {so} offen offset:{lo} {kvflags}", tag=f"C{n}")

    def kv_issue_safe(n, srdn):
        slot = RING + 4 * n
        off = joff(n)
        hi, lo = off & ~4095, off & 4095
        so = "s69"
        if hi:
            I(f"s_add_u32 s35, s69, {hi}"); so = "s35"
        I(f"buffer_load_dwordx4 v[{slot}:{slot+3}], v1, s[{srdn}:{srdn+3}], {so} offen offset:{lo} {kvflags}", tag=f"C{n}")

    srd(48, 16, 4096 * 1024 * 2)
    d0 = DF1 or DF
    for j in range(d0): kv_issue_safe(j, 40)
    I("s_barrier")
    I(f"v_and_b32 v{T0}, 15, v0"); I(f"v_lshrrev_b32 v{T0}, 1, v{T0}")
    I(f"v_mov_b32 v{T1}, 0xffff"); I(f"v_mov_b32 v{T2}, 0xffff0000"); I(f"v_cndmask_b32 v{T2}, v{T1}, v{T2}, s[64:65]")
    for t in range(4):
        I(f"v_cmp_eq_u32 vcc, {t}, v{T0}")
        I(f"v_cndmask_b32_e64 v{vSEL+t}, 0, v{T2}, vcc")
    I(f"v_mov_b32 v{vM}, 0xff800000"); I(f"v_mov_b32 v{vL}, 0")
    for r in range(4): I(f"v_mov_b32 v{vD+r}, 0")
    p_voffsets(VO, 2048, T0, T1)
    p_trbase(VTR, T0, T1, L_P0)
    I("s_lshl_b32 s57, s3, 5"); I(f"v_xor_b32 v{VTR}, s57, v{VTR}")
    I(f"v_and_b32 v{T0}, 7, v0"); I(f"v_mul_u32_u24 v{VOL}, 272, v{T0}")
    I(f"v_lshrrev_b32 v{T0}, 4, v0"); I(f"v_lshl_add_u32 v{VOL}, v{T0}, 4, v{VOL}"); I(f"v_add_u32 v{VOL}, {L_OL}, v{VOL}")
    I(f"v_and_b32 v{VST}, 7, v0"); I(f"v_lshlrev_b32 v{VST}, 8, v{VST}"); I(f"v_lshl_add_u32 v{VST}, v{T0}, 4, v{VST}")
    I(f"v_mov_b32 v{VMASK}, 0xffffff00")
    I("s_lshl_b32 s57, s3, 12"); I(f"s_add_u32 s70, s57, {L_SC}"); I(f"v_lshl_add_u32 v{VSC}, v0, 2, s70")
    I("s_mov_b32 s71, 0x3db504f3")
    for j in range(d0, 32):
        I(f"s_waitcnt vmcnt({(d0 if j < n1 else DF)-1})")
        kv_issue_safe(j, 40)
    get_epoch(vE)
    I("s_add_u32 s69, s69, 131072")

    def lds_wait(lbl, addr, cmp, val, sleep=1, lim=POLL_LIMIT*16):
        I(f"v_mov_b32 v{T0}, {addr}")
        I(f"s_mov_b32 s58, {1 if noaux and addr == L_FLAG else lim}")
        e.label(f"L_{lbl}w")
        I(f"ds_read_b32 v{T1}, v{T0}")
        I("s_waitcnt lgkmcnt(0)")
        I(f"v_readfirstlane_b32 s57, v{T1}")
        I(f"s_cmp_{cmp}_u32 s57, {val}"); I(f"s_cbranch_scc1 L_{lbl}k")
        I("s_sub_u32 s58, s58, 1"); I("s_cmp_eq_u32 s58, 0"); I(f"s_cbranch_scc1 L_{lbl}k")
        if sleep: I(f"s_sleep {sleep}")
        I(f"s_branch L_{lbl}w")
        e.label(f"L_{lbl}k")

    lds_wait("q", L_FLAG, "lg", 0)
    I(f"v_and_b32 v{T0}, 15, v0"); I(f"v_lshlrev_b32 v{T0}, 4, v{T0}")
    I(f"v_add_u32 v{T0}, {L_Q}, v{T0}")
    I(f"ds_read_b128 v[{vQ}:{vQ+3}], v{T0}")
    I("s_waitcnt lgkmcnt(0)")
    stamp()

    def kdot(n):
        slot = RING + 4 * n
        j = n % 16
        I(f"v_dot2_f32_bf16 v{SP+j}, v{slot}, v{vQ}, 0")
        for r in range(1, 4):
            I(f"v_dot2_f32_bf16 v{SP+j}, v{slot+r}, v{vQ+r}, v{SP+j}")

    def score_block(half):
        s = lambda i: SP + i
        for i in range(8):
            I(f"v_add_f32_dpp v{s(i)}, v{s(i)}, v{s(i)} row_ror:8 row_mask:0xf bank_mask:0x3")
            I(f"v_add_f32_dpp v{s(i)}, v{s(i+8)}, v{s(i+8)} row_ror:8 row_mask:0xf bank_mask:0xc")
        for i in range(4):
            I(f"v_add_f32_dpp v{s(i)}, v{s(i)}, v{s(i)} row_shl:4 row_mask:0xf bank_mask:0x5")
            I(f"v_add_f32_dpp v{s(i)}, v{s(i+4)}, v{s(i+4)} row_shr:4 row_mask:0xf bank_mask:0xa")
        I(f"v_cndmask_b32 v{T0}, v{s(0)}, v{s(2)}, s[62:63]"); I(f"v_cndmask_b32 v{T1}, v{s(2)}, v{s(0)}, s[62:63]")
        I(f"v_cndmask_b32 v{T2}, v{s(1)}, v{s(3)}, s[62:63]"); I(f"v_cndmask_b32 v{T3}, v{s(3)}, v{s(1)}, s[62:63]")
        I(f"v_add_f32_dpp v{T0}, v{T1}, v{T0} quad_perm:[2,3,0,1] row_mask:0xf bank_mask:0xf")
        I(f"v_add_f32_dpp v{T2}, v{T3}, v{T2} quad_perm:[2,3,0,1] row_mask:0xf bank_mask:0xf")
        I(f"v_cndmask_b32 v{vS}, v{T0}, v{T2}, s[64:65]"); I(f"v_cndmask_b32 v{T1}, v{T2}, v{T0}, s[64:65]")
        I(f"v_add_f32_dpp v{vS}, v{T1}, v{vS} quad_perm:[1,0,3,2] row_mask:0xf bank_mask:0xf")
        bf16_round(vS, vS)
        I(f"v_mul_f32 v{vS}, s71, v{vS}")
        bf16_round(vS, vS)
        I(f"ds_write_b32 v{VSC}, v{vS} offset:{half*256}")
        I(f"v_max_f32 v{T0}, v{vM}, v{vS}")
        I(f"v_sub_f32 v{T1}, v{vM}, v{T0}"); I(f"v_sub_f32 v{T2}, v{vS}, v{T0}")
        I(f"v_mul_f32 v{T1}, s68, v{T1}"); I(f"v_mul_f32 v{T2}, s68, v{T2}")
        I(f"v_exp_f32 v{T1}, v{T1}"); I(f"v_exp_f32 v{T2}, v{T2}")
        I(f"v_mov_b32 v{vM}, v{T0}")
        I(f"v_fma_f32 v{vL}, v{vL}, v{T1}, v{T2}")
        if half == 1: I(f"v_add_u32 v{VSC}, 512, v{VSC}")

    def pace_issue(n, srdn, d):
        I(f"s_waitcnt vmcnt({d-1})")
        if f"C{n}" in e.vm: e.vm.remove(f"C{n}")
        kv_issue_safe(n, srdn)

    def k_iter(d):
        for n in range(32):
            kdot(n)
            pace_issue(n, 40, d)
            if n % 16 == 15: score_block(n // 16)
        I("s_add_u32 s69, s69, 131072")

    def kv_transition(d, dprev=None):
        I("s_mov_b32 s69, s34")
        e.vm = [f"K{n}" for n in range(32 - (dprev or d), 32)]
        for v in range(32):
            if v < 8:
                for n in range(4 * v, 4 * v + 4):
                    e.wait_vm(f"K{n}")
                    kdot(n)
                if v % 4 == 3: score_block(v // 4)
            if v == 8:
                I(f"v_mov_b32 v{T0}, v{vM}")
                allreduce64("v_max_f32", T0, T1)
                I(f"v_sub_f32 v{T1}, v{vM}, v{T0}"); I(f"v_mul_f32 v{T1}, s68, v{T1}"); I(f"v_exp_f32 v{T1}, v{T1}")
                I(f"v_mul_f32 v{vL}, v{vL}, v{T1}"); I(f"v_mov_b32 v{vM}, v{T0}")
                allreduce64("v_add_f32", vL, T1)
                I(f"v_mov_b32 v{T0}, s3"); I(f"v_lshlrev_b32 v{T0}, 3, v{T0}"); I(f"v_add_u32 v{T0}, {L_ML}, v{T0}")
                I(f"ds_write_b64 v{T0}, v[{vM}:{vL}]")
                I(f"v_mov_b32 v{T0}, {L_SCNT}"); I(f"v_mov_b32 v{T1}, 1")
                I("s_waitcnt lgkmcnt(0)")
                I("s_mov_b64 exec, 1"); I(f"ds_add_u32 v{T0}, v{T1}"); I("s_mov_b64 exec, -1")
            I(f"s_waitcnt vmcnt({d-1})")
            kv_issue_safe(v, 44)
        I("s_add_u32 s69, s69, 131072")
        lds_wait("sc", L_SCNT, "ge", 4, sleep=0)
        I(f"v_mov_b32 v{T0}, {L_ML}")
        I(f"ds_read_b128 v[{SP}:{SP+3}], v{T0}"); I(f"ds_read_b128 v[{SP+4}:{SP+7}], v{T0} offset:16")
        I(f"v_lshl_add_u32 v{VSC}, v0, 2, s70")
        I(f"ds_read_b32 v{vS}, v{VSC}"); I(f"ds_read_b32 v{vS2}, v{VSC} offset:256")
        I("s_waitcnt lgkmcnt(2)")
        I(f"v_max3_f32 v{vM}, v{SP}, v{SP+2}, v{SP+4}"); I(f"v_max_f32 v{vM}, v{vM}, v{SP+6}")
        for k in range(4): I(f"v_sub_f32 v{SP+2*k}, v{SP+2*k}, v{vM}")
        for k in range(4): I(f"v_mul_f32 v{SP+2*k}, s68, v{SP+2*k}")
        for k in range(4): I(f"v_exp_f32 v{SP+2*k}, v{SP+2*k}")
        I(f"v_mul_f32 v{vL}, v{SP}, v{SP+1}")
        for k in range(1, 4): I(f"v_fmac_f32 v{vL}, v{SP+2*k}, v{SP+2*k+1}")
        I(f"v_rcp_f32 v{T0}, v{vL}")
        I(f"v_fma_f32 v{T1}, -v{vL}, v{T0}, 1.0"); I(f"v_fma_f32 v{vL}, v{T1}, v{T0}, v{T0}")

    def v_iter(d, last):
        if last:
            I(f"v_mov_b32 v{T0}, {L_LAST}"); I(f"v_mov_b32 v{T1}, 1"); I(f"ds_write_b32 v{T0}, v{T1}")
            tail_map(False)
            tail_bases(70, 59)
            if l2fast:
                I("s_lshr_b32 s57, s6, 1"); I("s_and_b32 s58, s6, 1"); I("s_lshl_b32 s58, s58, 4"); I("s_add_u32 s57, s57, s58")
                I("s_lshr_b32 s58, s3, 1"); I("s_lshl_b32 s58, s58, 3"); I("s_add_u32 s57, s57, s58")
                I("s_lshl_b32 s70, s57, 18"); I("s_and_b32 s57, s3, 1"); I("s_lshl_b32 s57, s57, 17"); I("s_add_u32 s70, s70, s57")
                I("s_lshl_b32 s57, s7, 7"); I("s_add_u32 s70, s70, s57")
            else:
                I("s_lshl_b32 s57, s3, 17"); I("s_add_u32 s70, s70, s57")
            I("s_lshl_b32 s57, s3, 6"); I("s_add_u32 s59, s59, s57"); I(f"s_add_u32 s59, s59, {WS_AP}")
            I("s_lshl_b32 s58, s3, 13")
            e.vm = [f"C{n}" for n in range(32 - d, 32)]
            for t in range(8):
                I(f"s_add_u32 m0, s58, {L_P0 + t*1024}")
                I(f"s_add_u32 s57, s70, {t*8*2048}")
                I(f"buffer_load_dwordx4 v{VO + (t&1)}, s[48:51], s57 offen {wflags} lds", tag=f"WO{t}")
        I("s_waitcnt lgkmcnt(0)")
        for hf, (src, dst) in enumerate(((vS, vP), (vS2, T4))):
            I(f"v_sub_f32 v{src}, v{src}, v{vM}"); I(f"v_mul_f32 v{src}, s68, v{src}"); I(f"v_exp_f32 v{src}, v{src}")
            I(f"v_mul_f32 v{src}, v{src}, v{vL}"); I(f"v_cvt_pk_bf16_f32 v{dst}, v{src}, v{src}")
        if not last:
            I(f"v_add_u32 v{VSC}, 512, v{VSC}")
            I(f"ds_read_b32 v{vS}, v{VSC}"); I(f"ds_read_b32 v{vS2}, v{VSC} offset:256")
        for n in range(32):
            slot = RING + 4 * n
            A = vA0 if n % 2 == 0 else vA1
            P = vP if n < 16 else T4
            for t in range(4):
                I(f"v_and_b32_dpp v{A+t}, v{P}, v{vSEL+t} row_newbcast:{n%16} row_mask:0xf bank_mask:0xf")
            if last: e.wait_vm(f"C{n}")
            I(f"v_mfma_f32_16x16x32_bf16 v[{vD}:{vD+3}], v[{A}:{A+3}], v[{slot}:{slot+3}], v[{vD}:{vD+3}]")
            if not last: pace_issue(n, 44, d)
        if not last: I("s_add_u32 s69, s69, 131072")

    if cps:
        vPS = 184
        I(f"v_mov_b32 v{vPS}, {L_PROG}")
        I("s_mov_b32 s59, 0")

        def top(lbl):
            e.label(f"L_top{lbl}")
            I(f"ds_read_b32 v{T1}, v{vPS} offset:4")
            I(f"v_mov_b32 v{T0}, s59"); I(f"ds_max_u32 v{vPS}, v{T0}")
            I("s_waitcnt lgkmcnt(0)")
            I(f"v_readfirstlane_b32 s57, v{T1}")
            I("s_lshl_b32 s58, s59, 1"); I("s_lshr_b32 s57, s57, s58"); I("s_and_b32 s57, s57, 3")
            for m in range(1, 4):
                I(f"s_cmp_eq_u32 s57, {m}"); I(f"s_cbranch_scc1 L_{lbl}body{m}")
        top("k")
        for m in range(4):
            e.label(f"L_kbody{m}")
            e.fence(2)
            k_iter(modes[m])
            I("s_add_u32 s59, s59, 1"); I("s_cmp_lt_u32 s59, 7"); I("s_cbranch_scc1 L_topk")
            if m < 3: I("s_branch L_ktrans")
        e.label("L_ktrans")
        I(f"v_mov_b32 v{T0}, s59"); I(f"ds_max_u32 v{vPS}, v{T0}")
        if midstamp: I("s_memrealtime s[94:95]")
        kv_transition(D, max(modes))
        I("s_mov_b32 s59, 8")
        top("v")
        for m in range(4):
            e.label(f"L_vbody{m}")
            e.fence(2)
            v_iter(modes[m], False)
            I("s_add_u32 s59, s59, 1"); I("s_cmp_lt_u32 s59, 15"); I("s_cbranch_scc1 L_topv")
            if m < 3: I("s_branch L_vlast")
        e.label("L_vlast")
        e.fence(2)
        v_iter(max(modes), True)
    else:
        ks_ = ksched or [(7, D)]
        assert sum(n for n, _ in ks_) == 7
        for li, (n, d) in enumerate(ks_):
            I(f"s_mov_b32 s59, {n}")
            e.label(f"L_kloop{li}")
            e.fence(2)
            k_iter(d)
            I("s_sub_u32 s59, s59, 1"); I("s_cmp_lg_u32 s59, 0"); I(f"s_cbranch_scc1 L_kloop{li}")
        if midstamp: I("s_memrealtime s[94:95]")
        kv_transition(D, ks_[-1][1])
    if cps:
        pass
    elif rk:
        I(f"s_mov_b32 s13, {n_st1 if rk2 else 7}"); I(f"s_mov_b32 s14, {L_DSEL}")
        e.label("L_stage")
        I(f"v_mov_b32 v{T0}, s14"); I(f"ds_read_b32 v{T1}, v{T0}"); I("s_waitcnt lgkmcnt(0)")
        I(f"v_readfirstlane_b32 s8, v{T1}")
        I("s_and_b32 s9, s8, 0xff"); I("s_bfe_u32 s10, s8, 0x80008"); I("s_lshr_b32 s12, s8, 16")
        I("s_sub_u32 s11, s13, s9"); I("s_sub_u32 s11, s11, s10"); I("s_sub_u32 s11, s11, s12")
        for nm, reg, d in (("hi2", 12, DHI2), ("hi", 9, DHI), ("lo", 10, DLO), ("mid", 11, D)):
            I(f"s_cmp_eq_u32 s{reg}, 0"); I(f"s_cbranch_scc1 L_vskip{nm}")
            e.label(f"L_vloop{nm}")
            e.fence(2)
            if rk2:
                I("s_sub_u32 s13, s13, 1"); I("s_cmp_lg_u32 s13, 0"); I(f"s_cbranch_scc1 L_np{nm}")
                I(f"v_mov_b32 v{T0}, {L_PR2}"); I(f"v_mov_b32 v{T1}, 1"); I(f"ds_write_b32 v{T0}, v{T1}")
                if last_early:
                    I(f"s_cmp_eq_u32 s14, {L_DSEL2}"); I(f"s_cbranch_scc0 L_np{nm}")
                    I(f"v_mov_b32 v{T0}, {L_LAST}"); I(f"ds_write_b32 v{T0}, v{T1}")
                e.label(f"L_np{nm}")
            v_iter(d, False)
            I(f"s_sub_u32 s{reg}, s{reg}, 1"); I(f"s_cmp_lg_u32 s{reg}, 0"); I(f"s_cbranch_scc1 L_vloop{nm}")
            e.label(f"L_vskip{nm}")
        if rk2:
            I(f"s_cmp_eq_u32 s14, {L_DSEL2}"); I("s_cbranch_scc1 L_stend")
            I(f"s_mov_b32 s13, {7 - n_st1}"); I(f"s_mov_b32 s14, {L_DSEL2}"); I("s_branch L_stage")
            e.label("L_stend")
        e.fence(2)
        v_iter(max(DHI, DHI2, D), True)
    else:
        sch = sched or [(7, D)]
        assert sum(n for n, _ in sch) == 7
        for li, (n, d) in enumerate(sch):
            I(f"s_mov_b32 s59, {n}")
            e.label(f"L_vloop{li}")
            e.fence(2)
            v_iter(d, False)
            I("s_sub_u32 s59, s59, 1"); I("s_cmp_lg_u32 s59, 0"); I(f"s_cbranch_scc1 L_vloop{li}")
        v_iter(sch[-1][1], True)
    stamp()
    if noaux:
        stamp(); stamp(); stamp()
        stamp_flush()
        I("s_endpgm")
    I(f"v_lshlrev_b32 v{T0}, 4, v0"); I("s_lshl_b32 s57, s3, 9"); I(f"s_add_u32 s57, s57, {L_PART}")
    I(f"v_add_u32 v{T0}, s57, v{T0}")
    I("s_mov_b32 s66, -1"); I("s_mov_b32 s67, 0"); I("s_mov_b64 exec, s[66:67]")
    I(f"ds_write_b128 v{T0}, v[{vD}:{vD+3}]")
    I("s_mov_b64 exec, -1")
    if bars:
        I("s_waitcnt lgkmcnt(0)")
        I("s_barrier")
    else:
        I(f"v_mov_b32 v{T0}, {L_DONE}"); I(f"v_mov_b32 v{T1}, 1")
        I("s_mov_b64 exec, 1")
        I(f"ds_add_u32 v{T0}, v{T1}")
        I("s_mov_b64 exec, -1")
    e.wait_vm_all()
    I(f"v_mov_b32 v{T0}, {L_CNT}"); I(f"v_mov_b32 v{T1}, 1")
    I("s_mov_b64 exec, 1")
    I(f"ds_add_u32 v{T0}, v{T1}")
    I("s_mov_b64 exec, -1")
    lds_wait("c", L_CNT, "ge", 4, sleep=0)
    FA, XB = 48, 80
    p_reads(VTR, FA, range(0, 4))
    I("s_waitcnt lgkmcnt(0)")
    p_reads(VTR, FA + 16, range(4, 8))
    stamp()
    if bars:
        I("s_waitcnt lgkmcnt(0)")
        I("s_barrier")
    else:
        lds_wait("og", L_OGF, "lg", 0, sleep=1)
    for ks in range(8):
        I(f"ds_read_b128 v[{XB+4*ks}:{XB+4*ks+3}], v{VOL} offset:{(ks>>2)*2176 + (ks&3)*64}")
    stamp()
    for ks in range(8):
        I(f"s_waitcnt lgkmcnt({7-ks})")
        c = "0" if ks == 0 else "v[32:35]"
        I(f"v_mfma_f32_16x16x32_bf16 v[32:35], v[{FA+4*ks}:{FA+4*ks+3}], v[{XB+4*ks}:{XB+4*ks+3}], {c}")
    tag_words(36, [32, 33, 34, 35], T0, VMASK)
    I("s_mov_b32 s66, 0x00ff00ff"); I("s_mov_b32 s67, 0x00ff00ff"); I("s_mov_b64 exec, s[66:67]")
    I(f"buffer_store_dwordx4 v[36:39], v{VST}, s[36:39], s59 offen {sfl}")
    I("s_mov_b64 exec, -1")
    stamp()
    if midstamp: nst[0] = 10
    stamp_flush()
    I("s_endpgm")

    e.label("L_aux0")
    e.vm = []; nst[0] = 1
    X, F0, F1, DD, S = 8, 40, 56, 72, 88
    VO, VTR, VAD, VST, VX, vE, VMASK = 176, 178, 179, 180, 181, 182, 183
    T0, T1, T2, T3 = 1, 2, 3, 4
    GX, GW = 96, 104
    R = 112
    I(f"v_mov_b32 v{T0}, {L_FLAG}")
    for r in range(4): I(f"v_mov_b32 v{4+r}, 0")
    I(f"ds_write_b128 v{T0}, v[4:7]"); I(f"ds_write_b128 v{T0}, v[4:7] offset:16"); I(f"ds_write_b128 v{T0}, v[4:7] offset:32")
    srd(44, 14, 1024 * 4096 * 2); srd(40, 8, 16384)
    load_epoch(vE)
    front_map(False, offs[0])
    xfrag_loads(X, VX, T0, 40)
    p_voffsets(VO, 8192, T0, T1)
    front_bases(8192)
    p_dma(range(WQF), VO, 44, 59, 8192, L_P0, "WQ")
    I("s_waitcnt lgkmcnt(0)")
    I("s_barrier")
    for t in range(WQF, 32):
        I(f"s_waitcnt vmcnt({WQF-1})")
        p_dma([t], VO, 44, 59, 8192, L_P0, "WQ")
    srd(48, 26, 2048); srd(52, 28, 16384)
    I(f"v_lshlrev_b32 v{T0}, 5, v0")
    I("s_bfe_u32 s57, s2, 0x30001"); I("s_lshl_b32 s57, s57, 11")
    I(f"buffer_load_dwordx4 v[{GX}:{GX+3}], v{T0}, s[40:43], s57 offen", tag="G0")
    I(f"buffer_load_dwordx4 v[{GX+4}:{GX+7}], v{T0}, s[40:43], s57 offen offset:16", tag="G1")
    I(f"buffer_load_dwordx4 v[{GW}:{GW+3}], v{T0}, s[48:51], 0 offen", tag="G2")
    I(f"buffer_load_dwordx4 v[{GW+4}:{GW+7}], v{T0}, s[48:51], 0 offen offset:16", tag="G3")
    p_trbase(VTR, T0, T1, L_P0)
    two_tile_voff(VST, T0, 11)
    I(f"v_mov_b32 v{VMASK}, 0xffffff00")
    I(f"s_add_u32 s69, s69, {WS_QP}")
    get_epoch(vE)
    stamp()
    p_gemm_full(VTR, VAD, F0, F1, DD, X, 4, "WQ", S, VMASK, T0, VST, 69)
    stamp()
    I("s_lshl_b32 s70, s5, 3"); I("s_add_u32 s70, s70, s4"); I("s_lshl_b32 s59, s70, 11"); I(f"s_add_u32 s59, s59, {WS_QP}")
    I(f"v_lshlrev_b32 v{VX}, 4, v0")

    def two_loads(R, soff):
        return [lambda: I(f"buffer_load_dwordx4 v[{R}:{R+3}], v{VX}, s[36:39], s{soff} offen {rfl}"),
                lambda: I(f"buffer_load_dwordx4 v[{R+4}:{R+7}], v{VX}, s[36:39], s{soff} offen offset:1024 {rfl}")]
    if q_delay: I(f"s_sleep {q_delay}")
    poll(two_loads(R, 59), [R, R + 4], "m", T0, T1, sleep_poll, masks=[8, 10])
    sum4_partials(R, T0)
    I(f"v_cvt_pk_bf16_f32 v{R+4}, v{R}, v{R+1}"); I(f"v_cvt_pk_bf16_f32 v{R+5}, v{R+2}, v{R+3}")
    I(f"v_and_b32 v{T1}, 31, v0"); I(f"v_lshlrev_b32 v{T1}, 3, v{T1}"); I(f"v_add_u32 v{T1}, {L_Q}, v{T1}")
    I(f"ds_write_b64 v{T1}, v[{R+4}:{R+5}]")
    I("s_waitcnt lgkmcnt(0)")
    I(f"v_mov_b32 v{T0}, {L_FLAG}"); I(f"v_mov_b32 v{T1}, 1")
    I(f"ds_write_b32 v{T0}, v{T1}")
    stamp()
    vZ = 5
    I(f"v_mov_b32 v{vZ}, 0")
    for i in range(8):
        I(f"v_lshlrev_b32 v{T0}, 16, v{GX+i}"); I(f"v_and_b32 v{T1}, 0xffff0000, v{GX+i}")
        I(f"v_lshlrev_b32 v{T2}, 16, v{GW+i}"); I(f"v_and_b32 v{T3}, 0xffff0000, v{GW+i}")
        I(f"v_mul_f32 v{T0}, v{T0}, v{T2}"); I(f"v_mul_f32 v{T1}, v{T1}, v{T3}")
        I(f"v_cvt_pk_bf16_f32 v{T0}, v{T0}, v{T1}")
        I(f"v_lshlrev_b32 v{T1}, 16, v{T0}"); I(f"v_and_b32 v{T0}, 0xffff0000, v{T0}")
        I(f"v_add_f32 v{vZ}, v{vZ}, v{T1}"); I(f"v_add_f32 v{vZ}, v{vZ}, v{T0}")
    allreduce64("v_add_f32", vZ, T0)
    bf16_round(vZ, vZ)
    I(f"v_mul_f32 v{vZ}, s68, v{vZ}"); I(f"v_exp_f32 v{vZ}, -v{vZ}")
    I(f"v_add_f32 v{vZ}, 1.0, v{vZ}"); I(f"v_rcp_f32 v{vZ}, v{vZ}")
    vG, vG1 = 6, 7
    bf16_round(vG, vZ)
    I(f"v_sub_f32 v{vG1}, 1.0, v{vG}")
    bf16_round(vG1, vG1)
    VR = 8
    I(f"v_lshrrev_b32 v{T0}, 3, v0"); I(f"v_lshlrev_b32 v{T0}, 11, v{T0}")
    I(f"v_and_b32 v{T1}, 7, v0"); I(f"v_lshl_add_u32 v{VR}, v{T1}, 4, v{T0}")
    I("s_lshr_b32 s57, s2, 4"); I("s_lshl_b32 s69, s57, 15")
    I("s_bfe_u32 s57, s2, 0x30001"); I("s_lshl_b32 s57, s57, 8"); I("s_add_u32 s69, s69, s57")
    I("s_and_b32 s57, s2, 1"); I("s_lshl_b32 s57, s57, 7"); I("s_add_u32 s69, s69, s57")

    def red_loads(R, region):
        I(f"s_add_u32 s59, s69, {region}"); I(f"s_add_u32 s71, s69, {region + 16384}")
        return [lambda: I(f"buffer_load_dwordx4 v[{R}:{R+3}], v{VR}, s[36:39], s59 offen {rfl}"),
                lambda: I(f"buffer_load_dwordx4 v[{R+4}:{R+7}], v{VR}, s[36:39], s71 offen {rfl}")]

    def red_sum(R, dst):
        for r in range(8): I(f"v_and_b32 v{R+r}, 0xffffff00, v{R+r}")
        for r in range(4): I(f"v_add_f32 v{R+r}, v{R+r}, v{R+4+r}")
        for r in range(4): I(f"v_add_f32_dpp v{R+r}, v{R+r}, v{R+r} row_ror:8 row_mask:0xf bank_mask:0xf")
        for which in (16, 32):
            for r in range(4): I(f"v_mov_b32 v{R+4+r}, v{R+r}")
            for r in range(4): I(f"v_permlane{which}_swap_b32 v{R+r}, v{R+4+r}")
            for r in range(4): I(f"v_add_f32 v{R+r}, v{R+r}, v{R+4+r}")
        for r in range(4): I(f"v_cvt_pk_bf16_f32 v{dst+r}, v{R+r}, v{R+r}")
        for r in range(4): I(f"v_lshlrev_b32 v{dst+r}, 16, v{dst+r}")
    vB = 12
    RB = 144
    VC, VOS, VOW = 9, 10, 11
    I(f"v_lshrrev_b32 v{T0}, 2, v0"); I(f"v_lshlrev_b32 v{VC}, 4, v{T0}")
    I(f"v_bfe_u32 v{T0}, v0, 1, 1"); I(f"v_lshl_add_u32 v{VC}, v{T0}, 8, v{VC}")
    I(f"v_and_b32 v{T0}, 1, v0"); I(f"v_lshl_add_u32 v{VC}, v{T0}, 3, v{VC}")
    I(f"v_add_u32 v{VC}, {L_PART}, v{VC}")
    I(f"v_add_u32 v40, 2048, v{VC}")
    I(f"v_mov_b32 v41, {L_ML}")
    I(f"v_lshlrev_b32 v{VOS}, 3, v0")
    I(f"s_lshl_b32 s70, s70, 9"); I(f"s_add_u32 s70, s70, {WS_OG}")
    I("v_mov_b32 v43, s56")
    I(f"v_lshrrev_b32 v{T0}, 5, v0"); I(f"v_mul_u32_u24 v{VOW}, 272, v{T0}")
    I(f"v_and_b32 v{T0}, 31, v0"); I(f"v_lshl_add_u32 v{VOW}, v{T0}, 3, v{VOW}"); I(f"v_add_u32 v{VOW}, {L_OL}, v{VOW}")
    tail_map(False)
    if l2fast:
        I("s_lshr_b32 s57, s6, 1"); I("s_and_b32 s58, s6, 1"); I("s_lshl_b32 s58, s58, 4"); I("s_add_u32 s57, s57, s58")
        I("s_lshl_b32 s57, s57, 12"); I(f"s_add_u32 s24, s57, {WS_OG2}"); I("s_add_u32 s25, s24, 32768")
    else:
        I("s_lshl_b32 s57, s6, 13")
        I(f"s_add_u32 s24, s57, {WS_OG}"); I("s_add_u32 s25, s24, 4096")
    stamp()
    if cps:
        srd(28, 30, 256)
        I(f"v_mov_b32 v44, {L_PROG}")
        I("s_mov_b32 s27, 0")
        I(f"s_mov_b32 s58, {POLL_LIMIT*64}")
        for ci, (cp, table) in enumerate(cps):
            e.label(f"L_ag{ci}")
            I("ds_read_b32 v46, v44")
            I("s_waitcnt lgkmcnt(0)")
            I("v_readfirstlane_b32 s57, v46")
            I(f"s_cmp_ge_u32 s57, {cp}"); I(f"s_cbranch_scc1 L_agdo{ci}")
            I("s_sub_u32 s58, s58, 1"); I("s_cmp_eq_u32 s58, 0"); I("s_cbranch_scc1 L_agend")
            I("s_sleep 4"); I(f"s_branch L_ag{ci}")
            e.label(f"L_agdo{ci}")
            I("v_mov_b32 v45, 1")
            I("s_mov_b64 exec, 1")
            I(f"buffer_atomic_add v45, off, s[28:31], 0 offset:{(ci % 2) * 128 + (ci // 2) * 4} sc0 sc1")
            I("s_mov_b64 exec, -1")
            e.wait_vm_all()
            I("v_readfirstlane_b32 s57, v45")

            def word(ms):
                wv = 0
                for i, m in enumerate(ms): wv |= m << (2 * (cp + 1 + i))
                return wv
            I(f"s_mov_b32 s59, {word(table[-1][1])}")
            for thr, ms in reversed(table[:-1]):
                I(f"s_cmp_lt_u32 s57, {thr}"); I(f"s_cselect_b32 s59, {word(ms)}, s59")
            I(f"s_and_b32 s27, s27, {(1 << (2 * (cp + 1))) - 1}"); I("s_or_b32 s27, s27, s59")
            I("v_mov_b32 v45, s27"); I("ds_write_b32 v44, v45 offset:4")
        e.label("L_agend")
    elif rk:
        srd(28, 30, 256)
        I(f"s_mov_b32 s58, {POLL_LIMIT*64}")
        cw = lambda r: r[1] | (r[2] << 8) | ((r[3] if len(r) > 3 else 0) << 16)
        for ci, (trig, dst, table) in enumerate([(L_SCNT, L_DSEL, rk)] + ([(L_PR2, L_DSEL2, rk2)] if rk2 else [])):
            I(f"v_mov_b32 v44, {trig}")
            e.label(f"L_ag{ci}")
            I("ds_read_b32 v46, v44")
            I("s_waitcnt lgkmcnt(0)")
            I("v_readfirstlane_b32 s57, v46")
            I("s_cmp_lg_u32 s57, 0"); I(f"s_cbranch_scc1 L_agdo{ci}")
            I("s_sub_u32 s58, s58, 1"); I("s_cmp_eq_u32 s58, 0"); I("s_cbranch_scc1 L_agend")
            I("s_sleep 4"); I(f"s_branch L_ag{ci}")
            e.label(f"L_agdo{ci}")
            I("v_mov_b32 v45, 1")
            I("s_mov_b64 exec, 1")
            I(f"buffer_atomic_add v45, off, s[28:31], 0 offset:{ci*128} sc0 sc1")
            I("s_mov_b64 exec, -1")
            e.wait_vm_all()
            I("v_readfirstlane_b32 s57, v45")
            I(f"s_mov_b32 s59, {cw(table[-1])}")
            for r in reversed(table[:-1]):
                I(f"s_cmp_lt_u32 s57, {r[0]}"); I(f"s_cselect_b32 s59, {cw(r)}, s59")
            I("v_mov_b32 v45, s59"); I(f"v_mov_b32 v44, {dst}")
            I("ds_write_b32 v44, v45")
        e.label("L_agend")
    if bars:
        I("s_barrier")
    else:
        I(f"v_mov_b32 v44, {L_DONE}")
        I(f"s_mov_b32 s58, {POLL_LIMIT*64}")
        e.label("L_dwait")
        I("ds_read_b32 v46, v44")
        I("s_waitcnt lgkmcnt(0)")
        I("v_readfirstlane_b32 s57, v46")
        I("s_cmp_ge_u32 s57, 4"); I("s_cbranch_scc1 L_dok")
        I("s_sub_u32 s58, s58, 1"); I("s_cmp_lg_u32 s58, 0"); I("s_cbranch_scc1 L_dwait")
        e.label("L_dok")
    stamp()
    I(f"ds_read2_b64 v[24:27], v{VC} offset0:0 offset1:64"); I(f"ds_read2_b64 v[28:31], v{VC} offset0:128 offset1:192")
    I("s_waitcnt lgkmcnt(0)")
    I("v_add_f32 v24, v24, v26"); I("v_add_f32 v25, v25, v27"); I("v_add_f32 v28, v28, v30"); I("v_add_f32 v29, v29, v31")
    I(f"v_add_f32 v{T2}, v24, v28"); I(f"v_add_f32 v{T3}, v25, v29")
    I(f"v_cvt_pk_bf16_f32 v42, v{T2}, v{T3}")
    if l2fast:
        I(f"s_add_u32 s57, s70, {WS_OG2 - WS_OG}")
        I(f"buffer_store_dwordx2 v[42:43], v{VOS}, s[36:39], s57 offen")
    I(f"buffer_store_dwordx2 v[42:43], v{VOS}, s[36:39], s70 offen {sfl}")
    stamp()
    olds = [(lambda i=i: I(f"buffer_load_dwordx4 v[{R+4*i}:{R+4*i+3}], v{VX}, s[36:39], s{24 if i < 4 else 25} offen offset:{(i&3)*1024} sc1")) for i in range(8)]
    for ld in red_loads(RB, WS_BP): ld()
    om = [8 + 2 * i for i in range(8)]

    def o_to_lds():
        for i in range(8):
            I(f"v_mov_b32 v{R+4*i+1}, v{R+4*i+2}")
            I(f"ds_write_b64 v{VOW}, v[{R+4*i}:{R+4*i+1}] offset:{(i>>2)*2176 + (i&3)*544}")
    if l2fast:
        poll(olds, [R + 4 * i for i in range(8)], "g8", T0, T1, tail_poll, masks=om, lim=l2fast)
        I("s_cmp_eq_u64 s[66:67], 0"); I("s_cbranch_scc1 L_ogot")
        I(f"s_sub_u32 s24, s24, {WS_OG2 - WS_OG}"); I(f"s_sub_u32 s25, s25, {WS_OG2 - WS_OG}")
        poll(olds, [R + 4 * i for i in range(8)], "g8", T0, T1, tail_poll, masks=om, keep=True)
        e.label("L_ogot")
    else:
        poll(olds, [R + 4 * i for i in range(8)], "g8", T0, T1, tail_poll, masks=om, to_rapid="L_orap" if rapid else None)
    o_to_lds()
    if rapid:
        I("s_branch L_odone")
        e.label("L_orap")
        o_to_lds()
        I(f"v_mov_b32 v45, v{VOW}")
        for i in range(1, 8):
            I(f"v_add_u32 v{T0}, {(i>>2)*2176 + (i&3)*544}, v{VOW}"); I(f"v_cndmask_b32 v45, v45, v{T0}, s[{om[i]}:{om[i]+1}]")
        rapid_poll("ro", om, [i * 1024 for i in range(8)], VX, 24, "g8", 152, 48, 44, T0, T1)
        I("v_mov_b32 v49, v50")
        I("ds_write_b64 v45, v[48:49]")
        I("s_mov_b64 exec, -1")
        e.label("L_odone")
    if bars:
        I("s_waitcnt lgkmcnt(0)")
        I("s_barrier")
    else:
        I(f"v_mov_b32 v44, {L_OGF}"); I("v_mov_b32 v45, 1"); I("ds_write_b32 v44, v45")
    stamp()

    def b_finish():
        red_sum(RB, vB)
        for r in range(4): I(f"v_mul_f32 v{vB+r}, v{vG1}, v{vB+r}")
        for r in range(4): I(f"v_cvt_pk_bf16_f32 v{vB+r}, v{vB+r}, v{vB+r}")
        for r in range(4): I(f"v_lshlrev_b32 v{vB+r}, 16, v{vB+r}")
    bl = red_loads(RB, WS_BP)
    I("s_mov_b32 s26, s59"); I("s_mov_b32 s27, s71")
    bl = [lambda: I(f"buffer_load_dwordx4 v[{RB}:{RB+3}], v{VR}, s[36:39], s26 offen {rfl}"),
          lambda: I(f"buffer_load_dwordx4 v[{RB+4}:{RB+7}], v{VR}, s[36:39], s27 offen {rfl}")]
    al = red_loads(R, WS_AP)
    I("s_bfe_u32 s57, s2, 0x30001"); I("s_lshl_b32 s34, s57, 11")
    I("s_lshr_b32 s57, s2, 4"); I("s_lshl_b32 s57, s57, 7"); I("s_add_u32 s34, s34, s57")
    I("s_and_b32 s57, s2, 1"); I("s_lshl_b32 s57, s57, 6"); I("s_add_u32 s34, s34, s57")
    I("s_mov_b64 s[8:9], 0"); I("s_mov_b64 s[10:11], 0"); I("s_mov_b64 s[12:13], -1"); I("s_mov_b64 s[14:15], -1")
    poll(bl + al, [RB, RB + 4, R, R + 4], "m", T0, T1, tail_poll, masks=[8, 10, 12, 14], keep=True, exit_masks=[8, 10])
    b_finish()
    I("s_or_b64 s[66:67], s[12:13], s[14:15]"); I("s_cbranch_scc0 L_adone")
    poll(al, [R, R + 4], "m", T0, T1, tail_poll, masks=[12, 14], keep=True)
    e.label("L_adone")
    e.fence(2)
    stamp()
    vA = 16
    red_sum(R, vA)
    for r in range(4): I(f"v_mul_f32 v{vA+r}, v{vG}, v{vA+r}")
    for r in range(4): I(f"v_cvt_pk_bf16_f32 v{vA+r}, v{vA+r}, v{vA+r}")
    for r in range(4): I(f"v_lshlrev_b32 v{vA+r}, 16, v{vA+r}")
    for r in range(4): I(f"v_add_f32 v{vA+r}, v{vA+r}, v{vB+r}")
    I(f"v_cvt_pk_bf16_f32 v20, v{vA}, v{vA+1}"); I(f"v_cvt_pk_bf16_f32 v21, v{vA+2}, v{vA+3}")
    I("s_mov_b64 exec, 0xff")
    I(f"buffer_store_dwordx2 v[20:21], v{VOS}, s[52:55], s34 offen {ofl}")
    I("s_cmp_lg_u32 s2, 0"); I("s_cbranch_scc1 L_aux0_done")
    I("s_mov_b64 exec, 1")
    I(f"buffer_store_dword v43, off, s[36:39], 0 offset:{e_off} {sfl}")
    e.label("L_aux0_done")
    I("s_mov_b64 exec, -1")
    stamp()
    stamp_flush()
    I("s_endpgm")

    e.label("L_aux1")
    e.vm = []; nst[0] = 1
    X, F0, F1, DD, S = 8, 40, 56, 72, 88
    VO, VTR, VAD, VST, VX, vE, VMASK, VTR2 = 176, 178, 179, 180, 181, 182, 183, 175
    T0, T1, T2, T3 = 1, 2, 3, 4
    srd(40, 8, 16384); srd(44, 20, 1024 * 3584 * 2); srd(48, 22, 1024 * 3584 * 2); srd(52, 24, 3584 * 1024 * 2)
    front_map(True, offs[2])
    front_bases(7168, 26, 70)
    front_map(True, offs[1])
    p_voffsets(VO, 7168, T0, T1)
    front_bases(7168)
    I("s_barrier")
    load_epoch(vE)
    xfrag_loads(X, VX, T0, 40)
    p_dma(range(GF), VO, 44, 59, 7168, L_P1, "WG")
    p_trbase(VTR, T0, T1, L_P1)
    I(f"v_add_u32 v{VTR2}, 32768, v{VTR}")
    two_tile_voff(VST, T0, 11)
    I(f"v_mov_b32 v{VMASK}, 0xffffff00")
    get_epoch(vE)
    for t in range(GF, 64):
        I(f"s_waitcnt vmcnt({GF-1})")
        if t < 32: p_dma([t], VO, 44, 59, 7168, L_P1, "WG")
        else: p_dma([t - 32], VO, 48, 26, 7168, L_P2, "WU")
    I(f"s_add_u32 s70, s70, {WS_UP}"); I(f"s_add_u32 s69, s69, {WS_GP}")
    if early_down and not late_down:
        VO2 = 170
        p_voffsets(VO2, 2048, T0, T1)
        tail_map(True)
        tail_bases(27, 28)
        for t in range(32):
            I(f"s_waitcnt vmcnt({GF-1})")
            p_dma([t], VO2, 52, 27, 2048, L_P3, "WD")
    stamp()
    p_gemm_full(VTR, VAD, F0, F1, DD, X, 4, "WG", S, VMASK, T0, VST, 69)
    p_gemm_full(VTR2, VAD, F0, F1, DD, X, 4, "WU", S + 8, VMASK, T0, VST, 70)
    stamp()
    if late_down:
        p_voffsets(VO, 2048, T0, T1)
        tail_map(True)
        tail_bases(27, 69)
        I(f"s_add_u32 s69, s69, {WS_BP}")
    elif early_down:
        I(f"s_add_u32 s69, s28, {WS_BP}")
        p_trbase(VTR, T0, T1, L_P3)
    else:
        gd = GD or GF
        p_voffsets(VO, 2048, T0, T1)
        tail_map(True)
        tail_bases(59, 69)
        I(f"s_add_u32 s69, s69, {WS_BP}")
        for t in range(32):
            if t >= gd: I(f"s_waitcnt vmcnt({gd-1})")
            p_dma([t], VO, 52, 59, 2048, L_P1, "WD")
    I("s_lshl_b32 s70, s5, 3"); I("s_add_u32 s70, s70, s4"); I("s_lshl_b32 s59, s70, 11")
    I(f"s_add_u32 s71, s59, {WS_UP}"); I(f"s_add_u32 s59, s59, {WS_GP}")
    I(f"v_lshlrev_b32 v{VX}, 4, v0")
    RG, RU = 104, 112
    for i in range(gu_delay): I("s_sleep 127")
    poll(two_loads(RG, 59) + two_loads(RU, 71), [RG, RG + 4, RU, RU + 4], "m", T0, T1, slow_poll, masks=[8, 10, 12, 14])
    sum4_partials(RG, T0); sum4_partials(RU, T0)
    I("s_mov_b32 s59, 0x3d372713")
    I("s_mov_b32 s71, 0x40135761")
    for c in range(4):
        g, u = RG + c, RU + c
        bf16_round(g, g); bf16_round(u, u)
        I(f"v_mul_f32 v{T0}, v{g}, v{g}")
        I(f"v_mul_f32 v{T0}, v{T0}, v{g}")
        I(f"v_fma_f32 v{T0}, v{T0}, s59, v{g}")
        I(f"v_mul_f32 v{T0}, s71, v{T0}")
        I(f"v_exp_f32 v{T0}, -v{T0}")
        I(f"v_add_f32 v{T0}, 1.0, v{T0}")
        I(f"v_rcp_f32 v{T0}, v{T0}")
        I(f"v_mul_f32 v{T0}, v{g}, v{T0}")
        bf16_round(T0, T0)
        I(f"v_mul_f32 v{g}, v{T0}, v{u}")
    I(f"v_cvt_pk_bf16_f32 v{RU}, v{RG}, v{RG+1}"); I(f"v_cvt_pk_bf16_f32 v{RU+2}, v{RG+2}, v{RG+3}")
    I(f"v_mov_b32 v{RU+1}, s56"); I(f"v_mov_b32 v{RU+3}, s56")
    I(f"s_lshl_b32 s70, s70, 9"); I(f"s_add_u32 s70, s70, {WS_HID}")
    I("s_mov_b32 s66, -1"); I("s_mov_b32 s67, 0"); I("s_mov_b64 exec, s[66:67]")
    I(f"buffer_store_dwordx4 v[{RU}:{RU+3}], v{VX}, s[36:39], s70 offen {sfl}")
    I("s_mov_b64 exec, -1")
    stamp()
    two_tile_voff(VST, T0, 8)
    I("s_lshl_b32 s59, s6, 13"); I(f"s_add_u32 s59, s59, {WS_HID}"); I("s_add_u32 s71, s59, 4096")
    VOW, VOL = 5, 6
    I(f"v_lshrrev_b32 v{T0}, 5, v0"); I(f"v_mul_u32_u24 v{VOW}, 272, v{T0}")
    I(f"v_and_b32 v{T0}, 31, v0"); I(f"v_lshl_add_u32 v{VOW}, v{T0}, 3, v{VOW}"); I(f"v_add_u32 v{VOW}, {L_HL}, v{VOW}")
    I(f"v_and_b32 v{T0}, 7, v0"); I(f"v_mul_u32_u24 v{VOL}, 272, v{T0}")
    I(f"v_lshrrev_b32 v{T0}, 4, v0"); I(f"v_lshl_add_u32 v{VOL}, v{T0}, 4, v{VOL}"); I(f"v_add_u32 v{VOL}, {L_HL}, v{VOL}")
    R = 104
    for i in range(hid_delay): I("s_sleep 127")
    hl = [(lambda i=i: I(f"buffer_load_dwordx4 v[{R+4*i}:{R+4*i+3}], v{VX}, s[36:39], s{59 if i < 4 else 71} offen offset:{(i&3)*1024} {rfl}")) for i in range(8)]
    poll(hl, [R + 4 * i for i in range(8)], "g8", T0, T1, slow_poll, masks=[8 + 2 * i for i in range(8)])
    for i in range(8):
        I(f"v_mov_b32 v{R+4*i+1}, v{R+4*i+2}")
        I(f"ds_write_b64 v{VOW}, v[{R+4*i}:{R+4*i+1}] offset:{(i>>2)*2176 + (i&3)*544}")
    I("s_waitcnt lgkmcnt(0)")
    for ks in range(8):
        I(f"ds_read_b128 v[{X+4*ks}:{X+4*ks+3}], v{VOL} offset:{(ks>>2)*2176 + (ks&3)*64}")
    I("s_waitcnt lgkmcnt(0)")
    if late_down:
        I(f"v_mov_b32 v{T0}, {L_LAST}")
        I(f"s_mov_b32 s58, {POLL_LIMIT*64}")
        e.label("L_lwait")
        I(f"ds_read_b32 v{T1}, v{T0}")
        I("s_waitcnt lgkmcnt(0)")
        I(f"v_readfirstlane_b32 s57, v{T1}")
        I("s_cmp_lg_u32 s57, 0"); I("s_cbranch_scc1 L_lok")
        I("s_sub_u32 s58, s58, 1"); I("s_cmp_eq_u32 s58, 0"); I("s_cbranch_scc1 L_lok")
        I("s_sleep 2"); I("s_branch L_lwait")
        e.label("L_lok")
        p_dma(range(32), VO, 52, 27, 2048, L_P1, "WD")
        p_gemm_full(VTR, VAD, F0, F1, DD, X, 4, "WD", S, VMASK, T0, VST, 69)
    else:
        p_gemm_full(VTR, VAD, F0, F1, DD, X, 4, None, S, VMASK, T0, VST, 69, defer=defer_bp)
    stamp()
    stamp_flush()
    e.label("L_end")
    I("s_endpgm")

    e.raw('.section .rodata,"a"'); e.raw(".p2align 6"); e.raw(f".amdhsa_kernel {KNAME}")
    e.raw("  .amdhsa_next_free_vgpr 192"); e.raw("  .amdhsa_next_free_sgpr 102"); e.raw("  .amdhsa_accum_offset 192")
    e.raw("  .amdhsa_group_segment_fixed_size 0"); e.raw("  .amdhsa_kernarg_size 104"); e.raw("  .amdhsa_user_sgpr_count 2")
    e.raw("  .amdhsa_user_sgpr_kernarg_segment_ptr 1"); e.raw("  .amdhsa_system_sgpr_workgroup_id_x 1"); e.raw(".end_amdhsa_kernel")
    open(path, "w").write(e.text())


if __name__ == "__main__":
    names = []
    for nm, kw in eval(open("variants6.txt").read()):
        gen(nm, **kw); names.append(nm)
    print(" ".join(names))
```

```python
import gen6, sys
ref = open('gated_mix__mha_block_cached__geglu_ffn__decode.s').read()
hdr = ref.split("; @launch")[0]
kw = dict(slow_poll=127, defer_bp=True, q_delay=80, hid_delay=2, pat='f', DHI=6, DHI2=8, DF=5, DF1=2, n1=10, GF=32, early_down=True, gu_delay=1,
          rk=[(20,0,2),(70,0,1),(150,0,0),(185,2,0),(212,3,0),(232,5,0),(248,4,0,1),(0,2,0,3)], n_st1=5,
          rk2=[(24,0,2),(85,0,1),(150,0,0),(185,1,0),(210,2,0),(235,1,0,1),(0,0,0,2)])
gen6.gen(sys.argv[1], header=hdr, **kw)
```

```python
import sys
from asmlib import Emitter

KNAME = "gated_mix__mha_block_cached__geglu_ffn__decode_kernel"

WS_E = 0
WS_QP = 1 << 20
WS_GP = 2 << 20
WS_UP = 3 << 20
WS_AP = 4 << 20
WS_BP = 5 << 20
WS_HID = 6 << 20
WS_OG = 7 << 20
WS_OG2 = 8 << 20
WS_STAMP = 14 << 20
WS_SIZE = 16 << 20
L_P0 = 0
L_P1 = 32768
L_P2 = 65536
L_Q = 98304
L_FLAG = 98304 + 256
L_CNT = 98304 + 260
L_LAST = 98304 + 264
L_PROG = 98304 + 268
L_DSEL = 98304 + 272
L_SCNT = 98304 + 276
L_DSEL2 = 98304 + 280
L_PR2 = 98304 + 284
L_DONE = 98304 + 288
L_OGF = 98304 + 292
L_ML = 98304 + 512
L_PART = 98304 + 1024
L_OL = 98304 + 1024 + 4096
L_HL = L_OL + 4608
L_SC = L_HL + 4608
L_P3 = L_SC + 16384
LDS_BYTES = L_SC + 16384

EPOCH_INC = 0x9E3779B9
POLL_LIMIT = 200000


def gen(path, D=5, stamps=False, kvflags="nt", wflags="nt", sleep_poll=1, DF=5, GF=12, slow_poll=64, tail_poll=1,
        noaux=False, header=None, hid_delay=0, noweights=False, nostore=False, nopoll=False, noreads=False, nodown=False, rfl='sc1', sfl='sc1', xfl='', q_delay=0, defer_bp=False, sched=None, e_off=0, ctl=None, ngrp=8, WQF=32, offs=(6, 0, 1, 7, 4), gu_delay=0, rot=0, early=False, pat='a', midstamp=False, rk=None, DHI=7, DLO=4, cps=None, modes=(5, 6, 4, 7), ksched=None, DHI2=7, early_down=False, GD=None, DF1=None, n1=0, rk2=None, n_st1=4, rapid=0, rsl=6, l2fast=0, l2fl='sc1', late_down=False, last_early=0, bars=True, ofl=''):
    e = Emitter()
    I = e.I
    nst = [0]

    def stamp():
        if stamps:
            k = nst[0]; nst[0] += 1
            assert k < 12
            I(f"s_memrealtime s[{76+2*k}:{77+2*k}]")

    def stamp_flush():
        if not stamps: return
        I("s_waitcnt lgkmcnt(0)")
        I("v_mov_b32 v1, 0")
        for k in range(nst[0]):
            I(f"v_writelane_b32 v1, s{76+2*k}, {k}")
        I("s_getreg_b32 s70, hwreg(HW_REG_XCC_ID)")
        I("v_writelane_b32 v1, s70, 15")
        I("s_getreg_b32 s70, hwreg(HW_REG_HW_ID)")
        I("v_writelane_b32 v1, s70, 14")
        I("s_lshl_b32 s70, s2, 3"); I("s_add_u32 s70, s70, s3"); I("s_lshl_b32 s70, s70, 6"); I(f"s_add_u32 s70, s70, {WS_STAMP}")
        I("v_mbcnt_lo_u32_b32 v2, -1, 0"); I("v_mbcnt_hi_u32_b32 v2, -1, v2"); I("v_lshlrev_b32 v2, 2, v2")
        I("s_mov_b64 exec, 0xffff")
        I("buffer_store_dword v1, v2, s[36:39], s70 offen")
        nst[0] = 0

    def srd(dst, ptr, size):
        I(f"s_mov_b32 s{dst}, s{ptr}"); I(f"s_and_b32 s{dst+1}, s{ptr+1}, 0xffff")
        I(f"s_mov_b32 s{dst+2}, {size}"); I(f"s_mov_b32 s{dst+3}, 0x20000")

    def load_epoch(v):
        I(f"buffer_load_dword v{v}, off, s[36:39], 0 offset:{e_off} {rfl}", tag="E")

    def get_epoch(v):
        e.wait_vm("E")
        I(f"v_readfirstlane_b32 s56, v{v}")
        I(f"s_add_u32 s56, s56, {EPOCH_INC}")
        I("s_mov_b32 s72, s56"); I("s_lshr_b32 s73, s56, 8"); I("s_lshr_b32 s74, s56, 16"); I("s_lshr_b32 s75, s56, 24")

    def p_voffsets(vo, stride, t1, t2):
        I(f"v_bfe_u32 v{t1}, v0, 4, 1"); I(f"v_lshlrev_b32 v{t1}, 1, v{t1}")
        I(f"v_and_b32 v{t2}, 7, v0"); I(f"v_xor_b32 v{t2}, v{t1}, v{t2}"); I(f"v_lshlrev_b32 v{t2}, 4, v{t2}")
        I(f"v_lshrrev_b32 v{t1}, 3, v0"); I(f"s_mov_b32 s57, {stride}"); I(f"v_mul_lo_u32 v{t1}, v{t1}, s57")
        I(f"v_add_u32 v{vo}, v{t1}, v{t2}")
        I(f"v_xor_b32 v{t2}, 64, v{t2}")
        I(f"v_add_u32 v{vo+1}, v{t1}, v{t2}")

    def p_dma(ts, vo, srdn, sbase, stride, ldsbase, tagp):
        for t in ts:
            if noweights or (nodown and tagp == "WD"):
                e.vm.append(f"{tagp}{t}"); continue
            I(f"s_mov_b32 m0, {ldsbase + t*1024}")
            I(f"s_add_u32 s57, s{sbase}, {t*8*stride}")
            I(f"buffer_load_dwordx4 v{vo + (t&1)}, s[{srdn}:{srdn+3}], s57 offen {wflags} lds", tag=f"{tagp}{t}")

    def p_trbase(vtr, t1, t2, ldsbase):
        I(f"v_lshrrev_b32 v{t1}, 4, v0"); I(f"v_bfe_u32 v{t2}, v0, 2, 2")
        I(f"v_lshl_add_u32 v{vtr}, v{t1}, 3, v{t2}"); I(f"v_lshlrev_b32 v{vtr}, 7, v{vtr}")
        I(f"v_bfe_u32 v{t1}, v0, 3, 2")
        I(f"v_lshl_add_u32 v{vtr}, v{t1}, 5, v{vtr}")
        I(f"v_and_b32 v{t1}, 3, v0"); I(f"v_lshl_add_u32 v{vtr}, v{t1}, 3, v{vtr}")
        if ldsbase: I(f"v_add_u32 v{vtr}, {ldsbase}, v{vtr}")

    def p_reads(vaddr, F, kss):
        for q, ks in enumerate(kss):
            for hf in range(2):
                r = F + q * 4 + hf * 2
                I(f"ds_read_b64_tr_b16 v[{r}:{r+1}], v{vaddr} offset:{ks*4096 + hf*512}")

    def tag_words(S, srcs, t, vmask):
        for r in range(4):
            I(f"v_add_u32 v{t}, 0x80, v{srcs[r]}")
            I(f"v_bfi_b32 v{S+r}, v{vmask}, v{t}, s{72+r}")

    def p_gemm_full(vtr, vad, F0, F1, Dd, X, xstride, tagp, S, vmask, t, vst, soff, defer=False):
        F = [F0, F1]
        batches = [(hf, ct) for hf in range(2) for ct in range(4)]

        def reads(n):
            hf, ct = batches[n]
            if tagp and ct == 0: e.wait_vm(f"{tagp}{16*hf+15}")
            I(f"v_xor_b32 v{vad}, {ct<<5}, v{vtr}")
            p_reads(vad, F[n & 1], range(4 * hf, 4 * hf + 4))
        reads(0)
        for n in range(8):
            hf, ct = batches[n]
            I("s_waitcnt lgkmcnt(0)")
            if n + 1 < 8: reads(n + 1)
            d = Dd + 4 * ct
            for q in range(4):
                ks = 4 * hf + q
                c = "0" if ks == 0 else f"v[{d}:{d+3}]"
                f = F[n & 1] + q * 4
                x = X + ks * xstride
                I(f"v_mfma_f32_16x16x32_bf16 v[{d}:{d+3}], v[{f}:{f+3}], v[{x}:{x+3}], {c}")
        for p in range(2):
            a, b = Dd + 8 * p, Dd + 8 * p + 4
            for r in range(4):
                I(f"v_cndmask_b32 v{a+r}, v{a+r}, v{b+r}, s[60:61]")
            tag_words(S + 4 * p, [a + r for r in range(4)], t, vmask)
            if not nostore and not defer: I(f"buffer_store_dwordx4 v[{S+4*p}:{S+4*p+3}], v{vst}, s[36:39], s{soff} offen offset:{p*128} {sfl}")
        if defer:
            I(f"v_mov_b32 v{t}, {L_LAST}")
            I(f"s_mov_b32 s58, {POLL_LIMIT*16}")
            e.label("L_lwait")
            I(f"ds_read_b32 v{t+1}, v{t}")
            I("s_waitcnt lgkmcnt(0)")
            I(f"v_readfirstlane_b32 s57, v{t+1}")
            I("s_cmp_lg_u32 s57, 0"); I("s_cbranch_scc1 L_lok")
            I("s_sub_u32 s58, s58, 1"); I("s_cmp_eq_u32 s58, 0"); I("s_cbranch_scc1 L_lok")
            I("s_sleep 8"); I("s_branch L_lwait")
            e.label("L_lok")
            for p in range(2):
                I(f"buffer_store_dwordx4 v[{S+4*p}:{S+4*p+3}], v{vst}, s[36:39], s{soff} offen offset:{p*128} {sfl}")

    def two_tile_voff(vst, t1, bstride_log2):
        I(f"v_and_b32 v{vst}, 7, v0"); I(f"v_lshlrev_b32 v{vst}, {bstride_log2}, v{vst}")
        I(f"v_bfe_u32 v{t1}, v0, 3, 1"); I(f"v_lshl_add_u32 v{vst}, v{t1}, 6, v{vst}")
        I(f"v_lshrrev_b32 v{t1}, 4, v0"); I(f"v_lshl_add_u32 v{vst}, v{t1}, 4, v{vst}")

    pollid = [0]

    def poll(loads, quads, kind, t1, t2, slp, masks=None, preloaded=False, to_rapid=None, lim=None, keep=False, exit_masks=None):
        k = pollid[0]; pollid[0] += 1
        I(f"s_mov_b32 s58, {1 if nopoll else (lim or POLL_LIMIT)}")
        if masks and not keep:
            for m in masks: I(f"s_mov_b64 s[{m}:{m+1}], {0 if preloaded else -1}")
        e.label(f"L_poll{k}")
        for i, ld in enumerate(loads):
            if masks:
                I(f"s_mov_b64 exec, s[{masks[i]}:{masks[i]+1}]")
                I(f"s_cbranch_execz L_pskip{k}_{i}")
            if not noreads: ld()
            if masks: e.label(f"L_pskip{k}_{i}")
        if masks: I("s_mov_b64 exec, -1")
        e.wait_vm_all()
        for i, q in enumerate(quads):
            if kind == "g8":
                I(f"v_xor_b32 v{t1}, s56, v{q+1}"); I(f"v_xor_b32 v{t2}, s56, v{q+3}")
                if masks or i == 0: I(f"v_or_b32 v{t1+2}, v{t1}, v{t2}")
                else: I(f"v_or3_b32 v{t1+2}, v{t1+2}, v{t1}, v{t2}")
            else:
                I(f"v_xor_b32 v{t1}, s72, v{q}"); I(f"v_xor_b32 v{t2}, s73, v{q+1}")
                if masks or i == 0: I(f"v_or_b32 v{t1+2}, v{t1}, v{t2}")
                else: I(f"v_or3_b32 v{t1+2}, v{t1+2}, v{t1}, v{t2}")
                I(f"v_xor_b32 v{t1}, s74, v{q+2}"); I(f"v_xor_b32 v{t2}, s75, v{q+3}")
                I(f"v_or3_b32 v{t1+2}, v{t1+2}, v{t1}, v{t2}")
                if masks: I(f"v_and_b32 v{t1+2}, 0xff, v{t1+2}")
            if masks:
                m = masks[i]
                I(f"v_cmp_ne_u32 s[{m}:{m+1}], 0, v{t1+2}")
        if masks:
            xm = exit_masks or masks
            I(f"s_mov_b64 s[66:67], s[{xm[0]}:{xm[0]+1}]")
            for m in xm[1:]: I(f"s_or_b64 s[66:67], s[66:67], s[{m}:{m+1}]")
            I("s_cmp_eq_u64 s[66:67], 0"); I(f"s_cbranch_scc1 L_pdone{k}")
            if to_rapid:
                I("s_bcnt1_i32_b64 s57, s[66:67]")
                for m in masks:
                    I(f"s_bcnt1_i32_b64 s35, s[{m}:{m+1}]"); I("s_sub_u32 s57, s57, s35")
                I("s_cmp_eq_u32 s57, 0"); I(f"s_cbranch_scc1 {to_rapid}")
        else:
            if kind == "m": I(f"v_and_b32 v{t1+2}, 0xff, v{t1+2}")
            I(f"v_cmp_ne_u32 vcc, 0, v{t1+2}")
            I("s_cmp_eq_u64 vcc, 0"); I(f"s_cbranch_scc1 L_pdone{k}")
        I("s_sub_u32 s58, s58, 1"); I("s_cmp_eq_u32 s58, 0"); I(f"s_cbranch_scc1 L_pdone{k}")
        sl = slp
        while sl > 0:
            I(f"s_sleep {min(sl,127)}"); sl -= 127
        I(f"s_branch L_poll{k}")
        e.label(f"L_pdone{k}")

    def rapid_poll(lbl, masks, deltas, vbase, soff, kind, X, Y, vad, t1, t2):
        I(f"v_mov_b32 v{vad}, v{vbase}")
        for m, d in zip(masks[1:], deltas[1:]):
            I(f"v_add_u32 v{t1}, {d}, v{vbase}"); I(f"v_cndmask_b32 v{vad}, v{vad}, v{t1}, s[{m}:{m+1}]")
        I("s_mov_b64 exec, s[66:67]")
        for i in range(rapid):
            if i: I(f"s_sleep {rsl}")
            I(f"buffer_load_dwordx4 v[{X+4*i}:{X+4*i+3}], v{vad}, s[36:39], s{soff} offen {rfl}")
        I(f"s_mov_b32 s58, {POLL_LIMIT}")
        e.label(f"L_{lbl}_loop")
        for i in range(rapid):
            q = X + 4 * i
            I(f"s_waitcnt vmcnt({rapid-1})")
            if kind == "g8":
                I(f"v_xor_b32 v{t1}, s56, v{q+1}"); I(f"v_xor_b32 v{t2}, s56, v{q+3}"); I(f"v_or_b32 v{t1}, v{t1}, v{t2}")
            else:
                I(f"v_xor_b32 v{t1}, s72, v{q}"); I(f"v_xor_b32 v{t2}, s73, v{q+1}"); I(f"v_or_b32 v{t1+2}, v{t1}, v{t2}")
                I(f"v_xor_b32 v{t1}, s74, v{q+2}"); I(f"v_xor_b32 v{t2}, s75, v{q+3}"); I(f"v_or3_b32 v{t1}, v{t1+2}, v{t1}, v{t2}")
                I(f"v_and_b32 v{t1}, 0xff, v{t1}")
            I(f"v_cmp_ne_u32 vcc, 0, v{t1}")
            I("s_cmp_eq_u64 vcc, 0"); I(f"s_cbranch_scc1 L_{lbl}_ok{i}")
            I(f"buffer_load_dwordx4 v[{q}:{q+3}], v{vad}, s[36:39], s{soff} offen {rfl}")
        I("s_sub_u32 s58, s58, 1"); I("s_cmp_lg_u32 s58, 0"); I(f"s_cbranch_scc1 L_{lbl}_loop")
        for i in range(rapid):
            e.label(f"L_{lbl}_ok{i}")
            for r in range(4): I(f"v_mov_b32 v{Y+r}, v{X+4*i+r}")
            if i + 1 < rapid: I(f"s_branch L_{lbl}_got")
        e.label(f"L_{lbl}_got")
        e.vm = []

    def bf16_round(dst, src):
        I(f"v_cvt_pk_bf16_f32 v{dst}, v{src}, v{src}")
        I(f"v_lshlrev_b32 v{dst}, 16, v{dst}")

    def swapadd(op, v, t, which):
        I(f"v_mov_b32 v{t}, v{v}"); I(f"v_permlane{which}_swap_b32 v{v}, v{t}"); I(f"{op} v{v}, v{v}, v{t}")

    def allreduce64(op, v, t):
        for r in (8, 4, 2, 1):
            I(f"{op}_dpp v{v}, v{v}, v{v} row_ror:{r} row_mask:0xf bank_mask:0xf")
        swapadd(op, v, t, 16); swapadd(op, v, t, 32)

    def xfrag_loads(X, vx, t1, srdn):
        I(f"v_and_b32 v{vx}, 7, v0"); I(f"v_lshlrev_b32 v{vx}, 11, v{vx}")
        I(f"v_lshrrev_b32 v{t1}, 4, v0"); I(f"v_lshl_add_u32 v{vx}, v{t1}, 4, v{vx}")
        I("s_lshl_b32 s57, s7, 9")
        for ks in range(8):
            I(f"buffer_load_dwordx4 v[{X+4*ks}:{X+4*ks+3}], v{vx}, s[{srdn}:{srdn+3}], s57 offen offset:{ks*64} {xfl}", tag=f"X{ks}")

    def front_map(ffn, off):
        n = 28 if ffn else 32
        I("s_and_b32 s57, s2, 7"); I("s_lshr_b32 s58, s2, 3")
        I(f"s_add_u32 s59, s58, {off}"); I(f"s_sub_u32 s6, s59, {n}"); I(f"s_cmp_ge_u32 s59, {n}"); I("s_cselect_b32 s59, s6, s59")
        I("s_lshr_b32 s7, s57, 1"); I("s_and_b32 s6, s57, 1"); I(f"s_mul_i32 s6, s6, {n}"); I("s_add_u32 s6, s6, s59")
        if ffn:
            I("s_lshl_b32 s57, s57, 2"); I("s_add_u32 s57, s57, s58"); I("s_sub_u32 s57, s57, 28")
            I("s_and_b32 s59, s57, 7"); I("s_add_u32 s59, s59, 56"); I("s_lshr_b32 s57, s57, 3")
            I("s_cmp_lt_u32 s58, 28"); I("s_cselect_b32 s6, s6, s59"); I("s_cselect_b32 s7, s7, s57")
            I("s_cselect_b32 s46, s46, 0"); I("s_cselect_b32 s50, s50, 0")

    def front_bases(stride, sb=59, sp=69):
        I(f"s_mul_i32 s{sb}, s7, {256*stride}"); I("s_lshl_b32 s57, s6, 7"); I(f"s_add_u32 s{sb}, s{sb}, s57")
        I(f"s_lshl_b32 s{sp}, s7, 9"); I("s_lshr_b32 s57, s6, 1"); I("s_lshl_b32 s57, s57, 14"); I(f"s_add_u32 s{sp}, s{sp}, s57")
        I("s_and_b32 s57, s6, 1"); I("s_lshl_b32 s57, s57, 8"); I(f"s_add_u32 s{sp}, s{sp}, s57")

    def tail_map(ffn):
        I("s_and_b32 s57, s2, 7"); I("s_lshr_b32 s58, s2, 3")
        if not ffn:
            I("s_lshl_b32 s6, s57, 1"); I("s_lshr_b32 s57, s58, 4"); I("s_add_u32 s6, s6, s57")
            I(f"s_add_u32 s7, s58, {offs[3]}"); I("s_and_b32 s7, s7, 15")
        else:
            I("s_lshl_b32 s6, s57, 2"); I("s_add_u32 s6, s6, s58"); I("s_add_u32 s6, s6, 196")
            I("s_mul_i32 s57, s57, 28"); I("s_add_u32 s57, s57, s58"); I(f"s_add_u32 s57, s57, {offs[4]}")
            I("s_sub_u32 s7, s57, 224"); I("s_cmp_ge_u32 s57, 224"); I("s_cselect_b32 s57, s7, s57")
            I("s_cmp_lt_u32 s58, 28"); I("s_cselect_b32 s57, s57, s6")
            I("s_lshr_b32 s6, s57, 4"); I("s_and_b32 s7, s57, 15")

    def tail_bases(sw, sp):
        I(f"s_lshl_b32 s{sw}, s6, 19"); I(f"s_lshl_b32 s{sp}, s6, 11")
        I("s_lshl_b32 s58, s7, 7"); I(f"s_add_u32 s{sw}, s{sw}, s58")
        I("s_lshl_b32 s58, s7, 15"); I(f"s_add_u32 s{sp}, s{sp}, s58")

    def sum4_partials(R, t):
        for r in range(8): I(f"v_and_b32 v{R+r}, 0xffffff00, v{R+r}")
        for r in range(4): I(f"v_add_f32 v{R+r}, v{R+r}, v{R+4+r}")
        for r in range(4): swapadd("v_add_f32", R + r, t, 32)

    if header: e.raw(header.rstrip("\n"))
    e.raw(f"; @launch grid=(256,1,1) block=(384,1,1) lds={LDS_BYTES + (32768 if early_down and not late_down else 0)}")
    e.raw('.amdgcn_target "amdgcn-amd-amdhsa--gfx950"')
    e.raw(".text"); e.raw(f".globl {KNAME}"); e.raw(".p2align 8"); e.raw(f".type {KNAME},@function"); e.raw(f"{KNAME}:")
    I("s_cmp_ge_u32 s2, 256"); I("s_cbranch_scc1 L_end")
    I("s_load_dwordx16 s[8:23], s[0:1], 0")
    I("s_load_dwordx8 s[24:31], s[0:1], 64")
    I("s_load_dwordx2 s[32:33], s[0:1], 96")
    if stamps: I("s_memrealtime s[76:77]")
    nst[0] = 1
    I("v_lshrrev_b32 v1, 6, v0")
    I("v_readfirstlane_b32 s3, v1")
    I("v_and_b32 v0, 63, v0")
    I("s_lshr_b32 s4, s2, 5"); I("s_and_b32 s5, s2, 31")
    I("s_mov_b32 s60, 0xff00ff00"); I("s_mov_b32 s61, 0xff00ff00")
    I("s_mov_b32 s62, 0xcccccccc"); I("s_mov_b32 s63, 0xcccccccc")
    I("s_mov_b32 s64, 0xaaaaaaaa"); I("s_mov_b32 s65, 0xaaaaaaaa")
    I("s_mov_b32 s68, 0x3fb8aa3b")
    I("s_waitcnt lgkmcnt(0)")
    srd(36, 32, WS_SIZE)
    if noaux:
        I("s_cmp_ge_u32 s3, 4"); I("s_cbranch_scc1 L_end")
    I("s_cmp_eq_u32 s3, 4"); I("s_cbranch_scc1 L_aux0")
    I("s_cmp_eq_u32 s3, 5"); I("s_cbranch_scc1 L_aux1")

    RING = 48
    SP = 32
    vM, vL, vP, T0, T1, T2 = 2, 3, 4, 5, 6, 7
    vD, vQ, vSEL, vA0, vA1, vS = 8, 12, 16, 20, 24, 28
    T3, T4 = 29, 30
    vE = 31
    VO, VTR, VOL, VST, VMASK, VSC, vS2 = 176, 178, 179, 180, 181, 182, 183
    srd(40, 10, 1 << 28); srd(44, 12, 1 << 28)
    I("v_lshlrev_b32 v1, 4, v0")
    wsh = {'a': 10, 'b': 12, 'f': 13}[pat]
    joff = {'a': lambda j: j * 4096, 'b': lambda j: (j >> 2) * 16384 + (j & 3) * 1024, 'f': lambda j: (j >> 3) * 32768 + (j & 7) * 1024}[pat]
    I("s_lshl_b32 s34, s2, 20"); I(f"s_lshl_b32 s57, s3, {wsh}"); I("s_add_u32 s34, s34, s57")
    I("s_mov_b32 s69, s34")
    load_epoch(vE)

    def kv_issue(n, srdn):
        slot = RING + 4 * n
        off = joff(n)
        hi, lo = off & ~4095, off & 4095
        if hi == 0:
            so = "s69"
        else:
            if lo == 0 or n == 0 or (joff(n - 1) & ~4095) != hi: I(f"s_add_u32 s57, s69, {hi}")
            so = "s57"
        I(f"buffer_load_dwordx4 v[{slot}:{slot+3}], v1, s[{srdn}:{srdn+3}], {so} offen offset:{lo} {kvflags}", tag=f"C{n}")

    def kv_issue_safe(n, srdn):
        slot = RING + 4 * n
        off = joff(n)
        hi, lo = off & ~4095, off & 4095
        so = "s69"
        if hi:
            I(f"s_add_u32 s35, s69, {hi}"); so = "s35"
        I(f"buffer_load_dwordx4 v[{slot}:{slot+3}], v1, s[{srdn}:{srdn+3}], {so} offen offset:{lo} {kvflags}", tag=f"C{n}")

    srd(48, 16, 4096 * 1024 * 2)
    d0 = DF1 or DF
    for j in range(d0): kv_issue_safe(j, 40)
    I("s_barrier")
    I(f"v_and_b32 v{T0}, 15, v0"); I(f"v_lshrrev_b32 v{T0}, 1, v{T0}")
    I(f"v_mov_b32 v{T1}, 0xffff"); I(f"v_mov_b32 v{T2}, 0xffff0000"); I(f"v_cndmask_b32 v{T2}, v{T1}, v{T2}, s[64:65]")
    for t in range(4):
        I(f"v_cmp_eq_u32 vcc, {t}, v{T0}")
        I(f"v_cndmask_b32_e64 v{vSEL+t}, 0, v{T2}, vcc")
    I(f"v_mov_b32 v{vM}, 0xff800000"); I(f"v_mov_b32 v{vL}, 0")
    for r in range(4): I(f"v_mov_b32 v{vD+r}, 0")
    p_voffsets(VO, 2048, T0, T1)
    p_trbase(VTR, T0, T1, L_P0)
    I("s_lshl_b32 s57, s3, 5"); I(f"v_xor_b32 v{VTR}, s57, v{VTR}")
    I(f"v_and_b32 v{T0}, 7, v0"); I(f"v_mul_u32_u24 v{VOL}, 272, v{T0}")
    I(f"v_lshrrev_b32 v{T0}, 4, v0"); I(f"v_lshl_add_u32 v{VOL}, v{T0}, 4, v{VOL}"); I(f"v_add_u32 v{VOL}, {L_OL}, v{VOL}")
    I(f"v_and_b32 v{VST}, 7, v0"); I(f"v_lshlrev_b32 v{VST}, 8, v{VST}"); I(f"v_lshl_add_u32 v{VST}, v{T0}, 4, v{VST}")
    I(f"v_mov_b32 v{VMASK}, 0xffffff00")
    I("s_lshl_b32 s57, s3, 12"); I(f"s_add_u32 s70, s57, {L_SC}"); I(f"v_lshl_add_u32 v{VSC}, v0, 2, s70")
    I("s_mov_b32 s71, 0x3db504f3")
    for j in range(d0, 32):
        I(f"s_waitcnt vmcnt({(d0 if j < n1 else DF)-1})")
        kv_issue_safe(j, 40)
    get_epoch(vE)
    I("s_add_u32 s69, s69, 131072")

    def lds_wait(lbl, addr, cmp, val, sleep=1, lim=POLL_LIMIT*16):
        I(f"v_mov_b32 v{T0}, {addr}")
        I(f"s_mov_b32 s58, {1 if noaux and addr == L_FLAG else lim}")
        e.label(f"L_{lbl}w")
        I(f"ds_read_b32 v{T1}, v{T0}")
        I("s_waitcnt lgkmcnt(0)")
        I(f"v_readfirstlane_b32 s57, v{T1}")
        I(f"s_cmp_{cmp}_u32 s57, {val}"); I(f"s_cbranch_scc1 L_{lbl}k")
        I("s_sub_u32 s58, s58, 1"); I("s_cmp_eq_u32 s58, 0"); I(f"s_cbranch_scc1 L_{lbl}k")
        if sleep: I(f"s_sleep {sleep}")
        I(f"s_branch L_{lbl}w")
        e.label(f"L_{lbl}k")

    lds_wait("q", L_FLAG, "lg", 0)
    I(f"v_and_b32 v{T0}, 15, v0"); I(f"v_lshlrev_b32 v{T0}, 4, v{T0}")
    I(f"v_add_u32 v{T0}, {L_Q}, v{T0}")
    I(f"ds_read_b128 v[{vQ}:{vQ+3}], v{T0}")
    I("s_waitcnt lgkmcnt(0)")
    stamp()

    def kdot(n):
        slot = RING + 4 * n
        j = n % 16
        I(f"v_dot2_f32_bf16 v{SP+j}, v{slot}, v{vQ}, 0")
        for r in range(1, 4):
            I(f"v_dot2_f32_bf16 v{SP+j}, v{slot+r}, v{vQ+r}, v{SP+j}")

    def score_block(half):
        s = lambda i: SP + i
        for i in range(8):
            I(f"v_add_f32_dpp v{s(i)}, v{s(i)}, v{s(i)} row_ror:8 row_mask:0xf bank_mask:0x3")
            I(f"v_add_f32_dpp v{s(i)}, v{s(i+8)}, v{s(i+8)} row_ror:8 row_mask:0xf bank_mask:0xc")
        for i in range(4):
            I(f"v_add_f32_dpp v{s(i)}, v{s(i)}, v{s(i)} row_shl:4 row_mask:0xf bank_mask:0x5")
            I(f"v_add_f32_dpp v{s(i)}, v{s(i+4)}, v{s(i+4)} row_shr:4 row_mask:0xf bank_mask:0xa")
        I(f"v_cndmask_b32 v{T0}, v{s(0)}, v{s(2)}, s[62:63]"); I(f"v_cndmask_b32 v{T1}, v{s(2)}, v{s(0)}, s[62:63]")
        I(f"v_cndmask_b32 v{T2}, v{s(1)}, v{s(3)}, s[62:63]"); I(f"v_cndmask_b32 v{T3}, v{s(3)}, v{s(1)}, s[62:63]")
        I(f"v_add_f32_dpp v{T0}, v{T1}, v{T0} quad_perm:[2,3,0,1] row_mask:0xf bank_mask:0xf")
        I(f"v_add_f32_dpp v{T2}, v{T3}, v{T2} quad_perm:[2,3,0,1] row_mask:0xf bank_mask:0xf")
        I(f"v_cndmask_b32 v{vS}, v{T0}, v{T2}, s[64:65]"); I(f"v_cndmask_b32 v{T1}, v{T2}, v{T0}, s[64:65]")
        I(f"v_add_f32_dpp v{vS}, v{T1}, v{vS} quad_perm:[1,0,3,2] row_mask:0xf bank_mask:0xf")
        bf16_round(vS, vS)
        I(f"v_mul_f32 v{vS}, s71, v{vS}")
        bf16_round(vS, vS)
        I(f"ds_write_b32 v{VSC}, v{vS} offset:{half*256}")
        I(f"v_max_f32 v{T0}, v{vM}, v{vS}")
        I(f"v_sub_f32 v{T1}, v{vM}, v{T0}"); I(f"v_sub_f32 v{T2}, v{vS}, v{T0}")
        I(f"v_mul_f32 v{T1}, s68, v{T1}"); I(f"v_mul_f32 v{T2}, s68, v{T2}")
        I(f"v_exp_f32 v{T1}, v{T1}"); I(f"v_exp_f32 v{T2}, v{T2}")
        I(f"v_mov_b32 v{vM}, v{T0}")
        I(f"v_fma_f32 v{vL}, v{vL}, v{T1}, v{T2}")
        if half == 1: I(f"v_add_u32 v{VSC}, 512, v{VSC}")

    def dd(d, n):
        import math
        lo = int(math.floor(d)); fr = d - lo
        return lo + (1 if fr and (int((n + 1) * fr) != int(n * fr)) else 0)

    def pace_issue(n, srdn, d):
        I(f"s_waitcnt vmcnt({dd(d, n)-1})")
        if f"C{n}" in e.vm: e.vm.remove(f"C{n}")
        kv_issue_safe(n, srdn)

    def k_iter(d):
        for n in range(32):
            kdot(n)
            pace_issue(n, 40, d)
            if n % 16 == 15: score_block(n // 16)
        I("s_add_u32 s69, s69, 131072")

    def kv_transition(d, dprev=None):
        I("s_mov_b32 s69, s34")
        e.vm = [f"K{n}" for n in range(32 - int((dprev or d) + 0.99), 32)]
        for v in range(32):
            if v < 8:
                for n in range(4 * v, 4 * v + 4):
                    e.wait_vm(f"K{n}")
                    kdot(n)
                if v % 4 == 3: score_block(v // 4)
            if v == 8:
                I(f"v_mov_b32 v{T0}, v{vM}")
                allreduce64("v_max_f32", T0, T1)
                I(f"v_sub_f32 v{T1}, v{vM}, v{T0}"); I(f"v_mul_f32 v{T1}, s68, v{T1}"); I(f"v_exp_f32 v{T1}, v{T1}")
                I(f"v_mul_f32 v{vL}, v{vL}, v{T1}"); I(f"v_mov_b32 v{vM}, v{T0}")
                allreduce64("v_add_f32", vL, T1)
                I(f"v_mov_b32 v{T0}, s3"); I(f"v_lshlrev_b32 v{T0}, 3, v{T0}"); I(f"v_add_u32 v{T0}, {L_ML}, v{T0}")
                I(f"ds_write_b64 v{T0}, v[{vM}:{vL}]")
                I(f"v_mov_b32 v{T0}, {L_SCNT}"); I(f"v_mov_b32 v{T1}, 1")
                I("s_waitcnt lgkmcnt(0)")
                I("s_mov_b64 exec, 1"); I(f"ds_add_u32 v{T0}, v{T1}"); I("s_mov_b64 exec, -1")
            I(f"s_waitcnt vmcnt({dd(d, v)-1})")
            kv_issue_safe(v, 44)
        I("s_add_u32 s69, s69, 131072")
        lds_wait("sc", L_SCNT, "ge", 4, sleep=0)
        I(f"v_mov_b32 v{T0}, {L_ML}")
        I(f"ds_read_b128 v[{SP}:{SP+3}], v{T0}"); I(f"ds_read_b128 v[{SP+4}:{SP+7}], v{T0} offset:16")
        I(f"v_lshl_add_u32 v{VSC}, v0, 2, s70")
        I(f"ds_read_b32 v{vS}, v{VSC}"); I(f"ds_read_b32 v{vS2}, v{VSC} offset:256")
        I("s_waitcnt lgkmcnt(2)")
        I(f"v_max3_f32 v{vM}, v{SP}, v{SP+2}, v{SP+4}"); I(f"v_max_f32 v{vM}, v{vM}, v{SP+6}")
        for k in range(4): I(f"v_sub_f32 v{SP+2*k}, v{SP+2*k}, v{vM}")
        for k in range(4): I(f"v_mul_f32 v{SP+2*k}, s68, v{SP+2*k}")
        for k in range(4): I(f"v_exp_f32 v{SP+2*k}, v{SP+2*k}")
        I(f"v_mul_f32 v{vL}, v{SP}, v{SP+1}")
        for k in range(1, 4): I(f"v_fmac_f32 v{vL}, v{SP+2*k}, v{SP+2*k+1}")
        I(f"v_rcp_f32 v{T0}, v{vL}")
        I(f"v_fma_f32 v{T1}, -v{vL}, v{T0}, 1.0"); I(f"v_fma_f32 v{vL}, v{T1}, v{T0}, v{T0}")

    def v_iter(d, last):
        if last:
            I(f"v_mov_b32 v{T0}, {L_LAST}"); I(f"v_mov_b32 v{T1}, 1"); I(f"ds_write_b32 v{T0}, v{T1}")
            tail_map(False)
            tail_bases(70, 59)
            if l2fast:
                I("s_lshr_b32 s57, s6, 1"); I("s_and_b32 s58, s6, 1"); I("s_lshl_b32 s58, s58, 4"); I("s_add_u32 s57, s57, s58")
                I("s_lshr_b32 s58, s3, 1"); I("s_lshl_b32 s58, s58, 3"); I("s_add_u32 s57, s57, s58")
                I("s_lshl_b32 s70, s57, 18"); I("s_and_b32 s57, s3, 1"); I("s_lshl_b32 s57, s57, 17"); I("s_add_u32 s70, s70, s57")
                I("s_lshl_b32 s57, s7, 7"); I("s_add_u32 s70, s70, s57")
            else:
                I("s_lshl_b32 s57, s3, 17"); I("s_add_u32 s70, s70, s57")
            I("s_lshl_b32 s57, s3, 6"); I("s_add_u32 s59, s59, s57"); I(f"s_add_u32 s59, s59, {WS_AP}")
            I("s_lshl_b32 s58, s3, 13")
            e.vm = [f"C{n}" for n in range(32 - int(d + 0.99), 32)]
            for t in range(8):
                I(f"s_add_u32 m0, s58, {L_P0 + t*1024}")
                I(f"s_add_u32 s57, s70, {t*8*2048}")
                I(f"buffer_load_dwordx4 v{VO + (t&1)}, s[48:51], s57 offen {wflags} lds", tag=f"WO{t}")
        I("s_waitcnt lgkmcnt(0)")
        for hf, (src, dst) in enumerate(((vS, vP), (vS2, T4))):
            I(f"v_sub_f32 v{src}, v{src}, v{vM}"); I(f"v_mul_f32 v{src}, s68, v{src}"); I(f"v_exp_f32 v{src}, v{src}")
            I(f"v_mul_f32 v{src}, v{src}, v{vL}"); I(f"v_cvt_pk_bf16_f32 v{dst}, v{src}, v{src}")
        if not last:
            I(f"v_add_u32 v{VSC}, 512, v{VSC}")
            I(f"ds_read_b32 v{vS}, v{VSC}"); I(f"ds_read_b32 v{vS2}, v{VSC} offset:256")
        for n in range(32):
            slot = RING + 4 * n
            A = vA0 if n % 2 == 0 else vA1
            P = vP if n < 16 else T4
            for t in range(4):
                I(f"v_and_b32_dpp v{A+t}, v{P}, v{vSEL+t} row_newbcast:{n%16} row_mask:0xf bank_mask:0xf")
            if last: e.wait_vm(f"C{n}")
            I(f"v_mfma_f32_16x16x32_bf16 v[{vD}:{vD+3}], v[{A}:{A+3}], v[{slot}:{slot+3}], v[{vD}:{vD+3}]")
            if not last: pace_issue(n, 44, d)
        if not last: I("s_add_u32 s69, s69, 131072")

    if cps:
        vPS = 184
        I(f"v_mov_b32 v{vPS}, {L_PROG}")
        I("s_mov_b32 s59, 0")

        def top(lbl):
            e.label(f"L_top{lbl}")
            I(f"ds_read_b32 v{T1}, v{vPS} offset:4")
            I(f"v_mov_b32 v{T0}, s59"); I(f"ds_max_u32 v{vPS}, v{T0}")
            I("s_waitcnt lgkmcnt(0)")
            I(f"v_readfirstlane_b32 s57, v{T1}")
            I("s_lshl_b32 s58, s59, 1"); I("s_lshr_b32 s57, s57, s58"); I("s_and_b32 s57, s57, 3")
            for m in range(1, 4):
                I(f"s_cmp_eq_u32 s57, {m}"); I(f"s_cbranch_scc1 L_{lbl}body{m}")
        top("k")
        for m in range(4):
            e.label(f"L_kbody{m}")
            e.fence(2)
            k_iter(modes[m])
            I("s_add_u32 s59, s59, 1"); I("s_cmp_lt_u32 s59, 7"); I("s_cbranch_scc1 L_topk")
            if m < 3: I("s_branch L_ktrans")
        e.label("L_ktrans")
        I(f"v_mov_b32 v{T0}, s59"); I(f"ds_max_u32 v{vPS}, v{T0}")
        if midstamp: I("s_memrealtime s[94:95]")
        kv_transition(D, max(modes))
        I("s_mov_b32 s59, 8")
        top("v")
        for m in range(4):
            e.label(f"L_vbody{m}")
            e.fence(2)
            v_iter(modes[m], False)
            I("s_add_u32 s59, s59, 1"); I("s_cmp_lt_u32 s59, 15"); I("s_cbranch_scc1 L_topv")
            if m < 3: I("s_branch L_vlast")
        e.label("L_vlast")
        e.fence(2)
        v_iter(max(modes), True)
    else:
        ks_ = ksched or [(7, D)]
        assert sum(n for n, _ in ks_) == 7
        for li, (n, d) in enumerate(ks_):
            I(f"s_mov_b32 s59, {n}")
            e.label(f"L_kloop{li}")
            e.fence(2)
            k_iter(d)
            I("s_sub_u32 s59, s59, 1"); I("s_cmp_lg_u32 s59, 0"); I(f"s_cbranch_scc1 L_kloop{li}")
        if midstamp: I("s_memrealtime s[94:95]")
        kv_transition(D, ks_[-1][1])
    if cps:
        pass
    elif rk:
        I(f"s_mov_b32 s13, {n_st1 if rk2 else 7}"); I(f"s_mov_b32 s14, {L_DSEL}")
        e.label("L_stage")
        I(f"v_mov_b32 v{T0}, s14"); I(f"ds_read_b32 v{T1}, v{T0}"); I("s_waitcnt lgkmcnt(0)")
        I(f"v_readfirstlane_b32 s8, v{T1}")
        I("s_and_b32 s9, s8, 0xff"); I("s_bfe_u32 s10, s8, 0x80008"); I("s_lshr_b32 s12, s8, 16")
        I("s_sub_u32 s11, s13, s9"); I("s_sub_u32 s11, s11, s10"); I("s_sub_u32 s11, s11, s12")
        for nm, reg, d in (("hi2", 12, DHI2), ("hi", 9, DHI), ("lo", 10, DLO), ("mid", 11, D)):
            I(f"s_cmp_eq_u32 s{reg}, 0"); I(f"s_cbranch_scc1 L_vskip{nm}")
            e.label(f"L_vloop{nm}")
            e.fence(2)
            if rk2:
                I("s_sub_u32 s13, s13, 1"); I("s_cmp_lg_u32 s13, 0"); I(f"s_cbranch_scc1 L_np{nm}")
                I(f"v_mov_b32 v{T0}, {L_PR2}"); I(f"v_mov_b32 v{T1}, 1"); I(f"ds_write_b32 v{T0}, v{T1}")
                if last_early:
                    I(f"s_cmp_eq_u32 s14, {L_DSEL2}"); I(f"s_cbranch_scc0 L_np{nm}")
                    I(f"v_mov_b32 v{T0}, {L_LAST}"); I(f"ds_write_b32 v{T0}, v{T1}")
                e.label(f"L_np{nm}")
            v_iter(d, False)
            I(f"s_sub_u32 s{reg}, s{reg}, 1"); I(f"s_cmp_lg_u32 s{reg}, 0"); I(f"s_cbranch_scc1 L_vloop{nm}")
            e.label(f"L_vskip{nm}")
        if rk2:
            I(f"s_cmp_eq_u32 s14, {L_DSEL2}"); I("s_cbranch_scc1 L_stend")
            I(f"s_mov_b32 s13, {7 - n_st1}"); I(f"s_mov_b32 s14, {L_DSEL2}"); I("s_branch L_stage")
            e.label("L_stend")
        e.fence(2)
        v_iter(max(DHI, DHI2, D), True)
    else:
        sch = sched or [(7, D)]
        assert sum(n for n, _ in sch) == 7
        for li, (n, d) in enumerate(sch):
            I(f"s_mov_b32 s59, {n}")
            e.label(f"L_vloop{li}")
            e.fence(2)
            v_iter(d, False)
            I("s_sub_u32 s59, s59, 1"); I("s_cmp_lg_u32 s59, 0"); I(f"s_cbranch_scc1 L_vloop{li}")
        v_iter(sch[-1][1], True)
    stamp()
    if noaux:
        stamp(); stamp(); stamp()
        stamp_flush()
        I("s_endpgm")
    I(f"v_lshlrev_b32 v{T0}, 4, v0"); I("s_lshl_b32 s57, s3, 9"); I(f"s_add_u32 s57, s57, {L_PART}")
    I(f"v_add_u32 v{T0}, s57, v{T0}")
    I("s_mov_b32 s66, -1"); I("s_mov_b32 s67, 0"); I("s_mov_b64 exec, s[66:67]")
    I(f"ds_write_b128 v{T0}, v[{vD}:{vD+3}]")
    I("s_mov_b64 exec, -1")
    if bars:
        I("s_waitcnt lgkmcnt(0)")
        I("s_barrier")
    else:
        I(f"v_mov_b32 v{T0}, {L_DONE}"); I(f"v_mov_b32 v{T1}, 1")
        I("s_mov_b64 exec, 1")
        I(f"ds_add_u32 v{T0}, v{T1}")
        I("s_mov_b64 exec, -1")
    e.wait_vm_all()
    I(f"v_mov_b32 v{T0}, {L_CNT}"); I(f"v_mov_b32 v{T1}, 1")
    I("s_mov_b64 exec, 1")
    I(f"ds_add_u32 v{T0}, v{T1}")
    I("s_mov_b64 exec, -1")
    lds_wait("c", L_CNT, "ge", 4, sleep=0)
    FA, XB = 48, 80
    p_reads(VTR, FA, range(0, 4))
    I("s_waitcnt lgkmcnt(0)")
    p_reads(VTR, FA + 16, range(4, 8))
    stamp()
    if bars:
        I("s_waitcnt lgkmcnt(0)")
        I("s_barrier")
    else:
        lds_wait("og", L_OGF, "lg", 0, sleep=1)
    for ks in range(8):
        I(f"ds_read_b128 v[{XB+4*ks}:{XB+4*ks+3}], v{VOL} offset:{(ks>>2)*2176 + (ks&3)*64}")
    stamp()
    for ks in range(8):
        I(f"s_waitcnt lgkmcnt({7-ks})")
        c = "0" if ks == 0 else "v[32:35]"
        I(f"v_mfma_f32_16x16x32_bf16 v[32:35], v[{FA+4*ks}:{FA+4*ks+3}], v[{XB+4*ks}:{XB+4*ks+3}], {c}")
    tag_words(36, [32, 33, 34, 35], T0, VMASK)
    I("s_mov_b32 s66, 0x00ff00ff"); I("s_mov_b32 s67, 0x00ff00ff"); I("s_mov_b64 exec, s[66:67]")
    I(f"buffer_store_dwordx4 v[36:39], v{VST}, s[36:39], s59 offen {sfl}")
    I("s_mov_b64 exec, -1")
    stamp()
    if midstamp: nst[0] = 10
    stamp_flush()
    I("s_endpgm")

    e.label("L_aux0")
    e.vm = []; nst[0] = 1
    X, F0, F1, DD, S = 8, 40, 56, 72, 88
    VO, VTR, VAD, VST, VX, vE, VMASK = 176, 178, 179, 180, 181, 182, 183
    T0, T1, T2, T3 = 1, 2, 3, 4
    GX, GW = 96, 104
    R = 112
    I(f"v_mov_b32 v{T0}, {L_FLAG}")
    for r in range(4): I(f"v_mov_b32 v{4+r}, 0")
    I(f"ds_write_b128 v{T0}, v[4:7]"); I(f"ds_write_b128 v{T0}, v[4:7] offset:16"); I(f"ds_write_b128 v{T0}, v[4:7] offset:32")
    srd(44, 14, 1024 * 4096 * 2); srd(40, 8, 16384)
    load_epoch(vE)
    front_map(False, offs[0])
    xfrag_loads(X, VX, T0, 40)
    p_voffsets(VO, 8192, T0, T1)
    front_bases(8192)
    p_dma(range(WQF), VO, 44, 59, 8192, L_P0, "WQ")
    I("s_waitcnt lgkmcnt(0)")
    I("s_barrier")
    for t in range(WQF, 32):
        I(f"s_waitcnt vmcnt({WQF-1})")
        p_dma([t], VO, 44, 59, 8192, L_P0, "WQ")
    srd(48, 26, 2048); srd(52, 28, 16384)
    I(f"v_lshlrev_b32 v{T0}, 5, v0")
    I("s_bfe_u32 s57, s2, 0x30001"); I("s_lshl_b32 s57, s57, 11")
    I(f"buffer_load_dwordx4 v[{GX}:{GX+3}], v{T0}, s[40:43], s57 offen", tag="G0")
    I(f"buffer_load_dwordx4 v[{GX+4}:{GX+7}], v{T0}, s[40:43], s57 offen offset:16", tag="G1")
    I(f"buffer_load_dwordx4 v[{GW}:{GW+3}], v{T0}, s[48:51], 0 offen", tag="G2")
    I(f"buffer_load_dwordx4 v[{GW+4}:{GW+7}], v{T0}, s[48:51], 0 offen offset:16", tag="G3")
    p_trbase(VTR, T0, T1, L_P0)
    two_tile_voff(VST, T0, 11)
    I(f"v_mov_b32 v{VMASK}, 0xffffff00")
    I(f"s_add_u32 s69, s69, {WS_QP}")
    get_epoch(vE)
    stamp()
    p_gemm_full(VTR, VAD, F0, F1, DD, X, 4, "WQ", S, VMASK, T0, VST, 69)
    stamp()
    I("s_lshl_b32 s70, s5, 3"); I("s_add_u32 s70, s70, s4"); I("s_lshl_b32 s59, s70, 11"); I(f"s_add_u32 s59, s59, {WS_QP}")
    I(f"v_lshlrev_b32 v{VX}, 4, v0")

    def two_loads(R, soff):
        return [lambda: I(f"buffer_load_dwordx4 v[{R}:{R+3}], v{VX}, s[36:39], s{soff} offen {rfl}"),
                lambda: I(f"buffer_load_dwordx4 v[{R+4}:{R+7}], v{VX}, s[36:39], s{soff} offen offset:1024 {rfl}")]
    if q_delay: I(f"s_sleep {q_delay}")
    poll(two_loads(R, 59), [R, R + 4], "m", T0, T1, sleep_poll, masks=[8, 10])
    sum4_partials(R, T0)
    I(f"v_cvt_pk_bf16_f32 v{R+4}, v{R}, v{R+1}"); I(f"v_cvt_pk_bf16_f32 v{R+5}, v{R+2}, v{R+3}")
    I(f"v_and_b32 v{T1}, 31, v0"); I(f"v_lshlrev_b32 v{T1}, 3, v{T1}"); I(f"v_add_u32 v{T1}, {L_Q}, v{T1}")
    I(f"ds_write_b64 v{T1}, v[{R+4}:{R+5}]")
    I("s_waitcnt lgkmcnt(0)")
    I(f"v_mov_b32 v{T0}, {L_FLAG}"); I(f"v_mov_b32 v{T1}, 1")
    I(f"ds_write_b32 v{T0}, v{T1}")
    stamp()
    vZ = 5
    I(f"v_mov_b32 v{vZ}, 0")
    for i in range(8):
        I(f"v_lshlrev_b32 v{T0}, 16, v{GX+i}"); I(f"v_and_b32 v{T1}, 0xffff0000, v{GX+i}")
        I(f"v_lshlrev_b32 v{T2}, 16, v{GW+i}"); I(f"v_and_b32 v{T3}, 0xffff0000, v{GW+i}")
        I(f"v_mul_f32 v{T0}, v{T0}, v{T2}"); I(f"v_mul_f32 v{T1}, v{T1}, v{T3}")
        I(f"v_cvt_pk_bf16_f32 v{T0}, v{T0}, v{T1}")
        I(f"v_lshlrev_b32 v{T1}, 16, v{T0}"); I(f"v_and_b32 v{T0}, 0xffff0000, v{T0}")
        I(f"v_add_f32 v{vZ}, v{vZ}, v{T1}"); I(f"v_add_f32 v{vZ}, v{vZ}, v{T0}")
    allreduce64("v_add_f32", vZ, T0)
    bf16_round(vZ, vZ)
    I(f"v_mul_f32 v{vZ}, s68, v{vZ}"); I(f"v_exp_f32 v{vZ}, -v{vZ}")
    I(f"v_add_f32 v{vZ}, 1.0, v{vZ}"); I(f"v_rcp_f32 v{vZ}, v{vZ}")
    vG, vG1 = 6, 7
    bf16_round(vG, vZ)
    I(f"v_sub_f32 v{vG1}, 1.0, v{vG}")
    bf16_round(vG1, vG1)
    VR = 8
    I(f"v_lshrrev_b32 v{T0}, 3, v0"); I(f"v_lshlrev_b32 v{T0}, 11, v{T0}")
    I(f"v_and_b32 v{T1}, 7, v0"); I(f"v_lshl_add_u32 v{VR}, v{T1}, 4, v{T0}")
    I("s_lshr_b32 s57, s2, 4"); I("s_lshl_b32 s69, s57, 15")
    I("s_bfe_u32 s57, s2, 0x30001"); I("s_lshl_b32 s57, s57, 8"); I("s_add_u32 s69, s69, s57")
    I("s_and_b32 s57, s2, 1"); I("s_lshl_b32 s57, s57, 7"); I("s_add_u32 s69, s69, s57")

    def red_loads(R, region):
        I(f"s_add_u32 s59, s69, {region}"); I(f"s_add_u32 s71, s69, {region + 16384}")
        return [lambda: I(f"buffer_load_dwordx4 v[{R}:{R+3}], v{VR}, s[36:39], s59 offen {rfl}"),
                lambda: I(f"buffer_load_dwordx4 v[{R+4}:{R+7}], v{VR}, s[36:39], s71 offen {rfl}")]

    def red_sum(R, dst):
        for r in range(8): I(f"v_and_b32 v{R+r}, 0xffffff00, v{R+r}")
        for r in range(4): I(f"v_add_f32 v{R+r}, v{R+r}, v{R+4+r}")
        for r in range(4): I(f"v_add_f32_dpp v{R+r}, v{R+r}, v{R+r} row_ror:8 row_mask:0xf bank_mask:0xf")
        for which in (16, 32):
            for r in range(4): I(f"v_mov_b32 v{R+4+r}, v{R+r}")
            for r in range(4): I(f"v_permlane{which}_swap_b32 v{R+r}, v{R+4+r}")
            for r in range(4): I(f"v_add_f32 v{R+r}, v{R+r}, v{R+4+r}")
        for r in range(4): I(f"v_cvt_pk_bf16_f32 v{dst+r}, v{R+r}, v{R+r}")
        for r in range(4): I(f"v_lshlrev_b32 v{dst+r}, 16, v{dst+r}")
    vB = 12
    RB = 144
    VC, VOS, VOW = 9, 10, 11
    I(f"v_lshrrev_b32 v{T0}, 2, v0"); I(f"v_lshlrev_b32 v{VC}, 4, v{T0}")
    I(f"v_bfe_u32 v{T0}, v0, 1, 1"); I(f"v_lshl_add_u32 v{VC}, v{T0}, 8, v{VC}")
    I(f"v_and_b32 v{T0}, 1, v0"); I(f"v_lshl_add_u32 v{VC}, v{T0}, 3, v{VC}")
    I(f"v_add_u32 v{VC}, {L_PART}, v{VC}")
    I(f"v_add_u32 v40, 2048, v{VC}")
    I(f"v_mov_b32 v41, {L_ML}")
    I(f"v_lshlrev_b32 v{VOS}, 3, v0")
    I(f"s_lshl_b32 s70, s70, 9"); I(f"s_add_u32 s70, s70, {WS_OG}")
    I("v_mov_b32 v43, s56")
    I(f"v_lshrrev_b32 v{T0}, 5, v0"); I(f"v_mul_u32_u24 v{VOW}, 272, v{T0}")
    I(f"v_and_b32 v{T0}, 31, v0"); I(f"v_lshl_add_u32 v{VOW}, v{T0}, 3, v{VOW}"); I(f"v_add_u32 v{VOW}, {L_OL}, v{VOW}")
    tail_map(False)
    if l2fast:
        I("s_lshr_b32 s57, s6, 1"); I("s_and_b32 s58, s6, 1"); I("s_lshl_b32 s58, s58, 4"); I("s_add_u32 s57, s57, s58")
        I("s_lshl_b32 s57, s57, 12"); I(f"s_add_u32 s24, s57, {WS_OG2}"); I("s_add_u32 s25, s24, 32768")
    else:
        I("s_lshl_b32 s57, s6, 13")
        I(f"s_add_u32 s24, s57, {WS_OG}"); I("s_add_u32 s25, s24, 4096")
    stamp()
    if cps:
        srd(28, 30, 256)
        I(f"v_mov_b32 v44, {L_PROG}")
        I("s_mov_b32 s27, 0")
        I(f"s_mov_b32 s58, {POLL_LIMIT*64}")
        for ci, (cp, table) in enumerate(cps):
            e.label(f"L_ag{ci}")
            I("ds_read_b32 v46, v44")
            I("s_waitcnt lgkmcnt(0)")
            I("v_readfirstlane_b32 s57, v46")
            I(f"s_cmp_ge_u32 s57, {cp}"); I(f"s_cbranch_scc1 L_agdo{ci}")
            I("s_sub_u32 s58, s58, 1"); I("s_cmp_eq_u32 s58, 0"); I("s_cbranch_scc1 L_agend")
            I("s_sleep 4"); I(f"s_branch L_ag{ci}")
            e.label(f"L_agdo{ci}")
            I("v_mov_b32 v45, 1")
            I("s_mov_b64 exec, 1")
            I(f"buffer_atomic_add v45, off, s[28:31], 0 offset:{(ci % 2) * 128 + (ci // 2) * 4} sc0 sc1")
            I("s_mov_b64 exec, -1")
            e.wait_vm_all()
            I("v_readfirstlane_b32 s57, v45")

            def word(ms):
                wv = 0
                for i, m in enumerate(ms): wv |= m << (2 * (cp + 1 + i))
                return wv
            I(f"s_mov_b32 s59, {word(table[-1][1])}")
            for thr, ms in reversed(table[:-1]):
                I(f"s_cmp_lt_u32 s57, {thr}"); I(f"s_cselect_b32 s59, {word(ms)}, s59")
            I(f"s_and_b32 s27, s27, {(1 << (2 * (cp + 1))) - 1}"); I("s_or_b32 s27, s27, s59")
            I("v_mov_b32 v45, s27"); I("ds_write_b32 v44, v45 offset:4")
        e.label("L_agend")
    elif rk:
        srd(28, 30, 256)
        I(f"s_mov_b32 s58, {POLL_LIMIT*64}")
        cw = lambda r: r[1] | (r[2] << 8) | ((r[3] if len(r) > 3 else 0) << 16)
        for ci, (trig, dst, table) in enumerate([(L_SCNT, L_DSEL, rk)] + ([(L_PR2, L_DSEL2, rk2)] if rk2 else [])):
            I(f"v_mov_b32 v44, {trig}")
            e.label(f"L_ag{ci}")
            I("ds_read_b32 v46, v44")
            I("s_waitcnt lgkmcnt(0)")
            I("v_readfirstlane_b32 s57, v46")
            I("s_cmp_lg_u32 s57, 0"); I(f"s_cbranch_scc1 L_agdo{ci}")
            I("s_sub_u32 s58, s58, 1"); I("s_cmp_eq_u32 s58, 0"); I("s_cbranch_scc1 L_agend")
            I("s_sleep 4"); I(f"s_branch L_ag{ci}")
            e.label(f"L_agdo{ci}")
            I("v_mov_b32 v45, 1")
            I("s_mov_b64 exec, 1")
            I(f"buffer_atomic_add v45, off, s[28:31], 0 offset:{ci*128} sc0 sc1")
            I("s_mov_b64 exec, -1")
            e.wait_vm_all()
            I("v_readfirstlane_b32 s57, v45")
            I(f"s_mov_b32 s59, {cw(table[-1])}")
            for r in reversed(table[:-1]):
                I(f"s_cmp_lt_u32 s57, {r[0]}"); I(f"s_cselect_b32 s59, {cw(r)}, s59")
            I("v_mov_b32 v45, s59"); I(f"v_mov_b32 v44, {dst}")
            I("ds_write_b32 v44, v45")
        e.label("L_agend")
    if bars:
        I("s_barrier")
    else:
        I(f"v_mov_b32 v44, {L_DONE}")
        I(f"s_mov_b32 s58, {POLL_LIMIT*64}")
        e.label("L_dwait")
        I("ds_read_b32 v46, v44")
        I("s_waitcnt lgkmcnt(0)")
        I("v_readfirstlane_b32 s57, v46")
        I("s_cmp_ge_u32 s57, 4"); I("s_cbranch_scc1 L_dok")
        I("s_sub_u32 s58, s58, 1"); I("s_cmp_lg_u32 s58, 0"); I("s_cbranch_scc1 L_dwait")
        e.label("L_dok")
    stamp()
    I(f"ds_read2_b64 v[24:27], v{VC} offset0:0 offset1:64"); I(f"ds_read2_b64 v[28:31], v{VC} offset0:128 offset1:192")
    I("s_waitcnt lgkmcnt(0)")
    I("v_add_f32 v24, v24, v26"); I("v_add_f32 v25, v25, v27"); I("v_add_f32 v28, v28, v30"); I("v_add_f32 v29, v29, v31")
    I(f"v_add_f32 v{T2}, v24, v28"); I(f"v_add_f32 v{T3}, v25, v29")
    I(f"v_cvt_pk_bf16_f32 v42, v{T2}, v{T3}")
    if l2fast:
        I(f"s_add_u32 s57, s70, {WS_OG2 - WS_OG}")
        I(f"buffer_store_dwordx2 v[42:43], v{VOS}, s[36:39], s57 offen")
    I(f"buffer_store_dwordx2 v[42:43], v{VOS}, s[36:39], s70 offen {sfl}")
    stamp()
    olds = [(lambda i=i: I(f"buffer_load_dwordx4 v[{R+4*i}:{R+4*i+3}], v{VX}, s[36:39], s{24 if i < 4 else 25} offen offset:{(i&3)*1024} sc1")) for i in range(8)]
    for ld in red_loads(RB, WS_BP): ld()
    om = [8 + 2 * i for i in range(8)]

    def o_to_lds():
        for i in range(8):
            I(f"v_mov_b32 v{R+4*i+1}, v{R+4*i+2}")
            I(f"ds_write_b64 v{VOW}, v[{R+4*i}:{R+4*i+1}] offset:{(i>>2)*2176 + (i&3)*544}")
    if l2fast:
        poll(olds, [R + 4 * i for i in range(8)], "g8", T0, T1, tail_poll, masks=om, lim=l2fast)
        I("s_cmp_eq_u64 s[66:67], 0"); I("s_cbranch_scc1 L_ogot")
        I(f"s_sub_u32 s24, s24, {WS_OG2 - WS_OG}"); I(f"s_sub_u32 s25, s25, {WS_OG2 - WS_OG}")
        poll(olds, [R + 4 * i for i in range(8)], "g8", T0, T1, tail_poll, masks=om, keep=True)
        e.label("L_ogot")
    else:
        poll(olds, [R + 4 * i for i in range(8)], "g8", T0, T1, tail_poll, masks=om, to_rapid="L_orap" if rapid else None)
    o_to_lds()
    if rapid:
        I("s_branch L_odone")
        e.label("L_orap")
        o_to_lds()
        I(f"v_mov_b32 v45, v{VOW}")
        for i in range(1, 8):
            I(f"v_add_u32 v{T0}, {(i>>2)*2176 + (i&3)*544}, v{VOW}"); I(f"v_cndmask_b32 v45, v45, v{T0}, s[{om[i]}:{om[i]+1}]")
        rapid_poll("ro", om, [i * 1024 for i in range(8)], VX, 24, "g8", 152, 48, 44, T0, T1)
        I("v_mov_b32 v49, v50")
        I("ds_write_b64 v45, v[48:49]")
        I("s_mov_b64 exec, -1")
        e.label("L_odone")
    if bars:
        I("s_waitcnt lgkmcnt(0)")
        I("s_barrier")
    else:
        I(f"v_mov_b32 v44, {L_OGF}"); I("v_mov_b32 v45, 1"); I("ds_write_b32 v44, v45")
    stamp()

    def b_finish():
        red_sum(RB, vB)
        for r in range(4): I(f"v_mul_f32 v{vB+r}, v{vG1}, v{vB+r}")
        for r in range(4): I(f"v_cvt_pk_bf16_f32 v{vB+r}, v{vB+r}, v{vB+r}")
        for r in range(4): I(f"v_lshlrev_b32 v{vB+r}, 16, v{vB+r}")
    bl = red_loads(RB, WS_BP)
    I("s_mov_b32 s26, s59"); I("s_mov_b32 s27, s71")
    bl = [lambda: I(f"buffer_load_dwordx4 v[{RB}:{RB+3}], v{VR}, s[36:39], s26 offen {rfl}"),
          lambda: I(f"buffer_load_dwordx4 v[{RB+4}:{RB+7}], v{VR}, s[36:39], s27 offen {rfl}")]
    al = red_loads(R, WS_AP)
    I("s_bfe_u32 s57, s2, 0x30001"); I("s_lshl_b32 s34, s57, 11")
    I("s_lshr_b32 s57, s2, 4"); I("s_lshl_b32 s57, s57, 7"); I("s_add_u32 s34, s34, s57")
    I("s_and_b32 s57, s2, 1"); I("s_lshl_b32 s57, s57, 6"); I("s_add_u32 s34, s34, s57")
    I("s_mov_b64 s[8:9], 0"); I("s_mov_b64 s[10:11], 0"); I("s_mov_b64 s[12:13], -1"); I("s_mov_b64 s[14:15], -1")
    poll(bl + al, [RB, RB + 4, R, R + 4], "m", T0, T1, tail_poll, masks=[8, 10, 12, 14], keep=True, exit_masks=[8, 10])
    b_finish()
    I("s_or_b64 s[66:67], s[12:13], s[14:15]"); I("s_cbranch_scc0 L_adone")
    poll(al, [R, R + 4], "m", T0, T1, tail_poll, masks=[12, 14], keep=True)
    e.label("L_adone")
    e.fence(2)
    stamp()
    vA = 16
    red_sum(R, vA)
    for r in range(4): I(f"v_mul_f32 v{vA+r}, v{vG}, v{vA+r}")
    for r in range(4): I(f"v_cvt_pk_bf16_f32 v{vA+r}, v{vA+r}, v{vA+r}")
    for r in range(4): I(f"v_lshlrev_b32 v{vA+r}, 16, v{vA+r}")
    for r in range(4): I(f"v_add_f32 v{vA+r}, v{vA+r}, v{vB+r}")
    I(f"v_cvt_pk_bf16_f32 v20, v{vA}, v{vA+1}"); I(f"v_cvt_pk_bf16_f32 v21, v{vA+2}, v{vA+3}")
    I("s_mov_b64 exec, 0xff")
    I(f"buffer_store_dwordx2 v[20:21], v{VOS}, s[52:55], s34 offen {ofl}")
    I("s_cmp_lg_u32 s2, 0"); I("s_cbranch_scc1 L_aux0_done")
    I("s_mov_b64 exec, 1")
    I(f"buffer_store_dword v43, off, s[36:39], 0 offset:{e_off} {sfl}")
    e.label("L_aux0_done")
    I("s_mov_b64 exec, -1")
    stamp()
    stamp_flush()
    I("s_endpgm")

    e.label("L_aux1")
    e.vm = []; nst[0] = 1
    X, F0, F1, DD, S = 8, 40, 56, 72, 88
    VO, VTR, VAD, VST, VX, vE, VMASK, VTR2 = 176, 178, 179, 180, 181, 182, 183, 175
    T0, T1, T2, T3 = 1, 2, 3, 4
    srd(40, 8, 16384); srd(44, 20, 1024 * 3584 * 2); srd(48, 22, 1024 * 3584 * 2); srd(52, 24, 3584 * 1024 * 2)
    front_map(True, offs[2])
    front_bases(7168, 26, 70)
    front_map(True, offs[1])
    p_voffsets(VO, 7168, T0, T1)
    front_bases(7168)
    I("s_barrier")
    load_epoch(vE)
    xfrag_loads(X, VX, T0, 40)
    p_dma(range(GF), VO, 44, 59, 7168, L_P1, "WG")
    p_trbase(VTR, T0, T1, L_P1)
    I(f"v_add_u32 v{VTR2}, 32768, v{VTR}")
    two_tile_voff(VST, T0, 11)
    I(f"v_mov_b32 v{VMASK}, 0xffffff00")
    get_epoch(vE)
    for t in range(GF, 64):
        I(f"s_waitcnt vmcnt({GF-1})")
        if t < 32: p_dma([t], VO, 44, 59, 7168, L_P1, "WG")
        else: p_dma([t - 32], VO, 48, 26, 7168, L_P2, "WU")
    I(f"s_add_u32 s70, s70, {WS_UP}"); I(f"s_add_u32 s69, s69, {WS_GP}")
    if early_down and not late_down:
        VO2 = 170
        p_voffsets(VO2, 2048, T0, T1)
        tail_map(True)
        tail_bases(27, 28)
        for t in range(32):
            I(f"s_waitcnt vmcnt({GF-1})")
            p_dma([t], VO2, 52, 27, 2048, L_P3, "WD")
    stamp()
    p_gemm_full(VTR, VAD, F0, F1, DD, X, 4, "WG", S, VMASK, T0, VST, 69)
    p_gemm_full(VTR2, VAD, F0, F1, DD, X, 4, "WU", S + 8, VMASK, T0, VST, 70)
    stamp()
    if late_down:
        p_voffsets(VO, 2048, T0, T1)
        tail_map(True)
        tail_bases(27, 69)
        I(f"s_add_u32 s69, s69, {WS_BP}")
    elif early_down:
        I(f"s_add_u32 s69, s28, {WS_BP}")
        p_trbase(VTR, T0, T1, L_P3)
    else:
        gd = GD or GF
        p_voffsets(VO, 2048, T0, T1)
        tail_map(True)
        tail_bases(59, 69)
        I(f"s_add_u32 s69, s69, {WS_BP}")
        for t in range(32):
            if t >= gd: I(f"s_waitcnt vmcnt({gd-1})")
            p_dma([t], VO, 52, 59, 2048, L_P1, "WD")
    I("s_lshl_b32 s70, s5, 3"); I("s_add_u32 s70, s70, s4"); I("s_lshl_b32 s59, s70, 11")
    I(f"s_add_u32 s71, s59, {WS_UP}"); I(f"s_add_u32 s59, s59, {WS_GP}")
    I(f"v_lshlrev_b32 v{VX}, 4, v0")
    RG, RU = 104, 112
    for i in range(gu_delay): I("s_sleep 127")
    poll(two_loads(RG, 59) + two_loads(RU, 71), [RG, RG + 4, RU, RU + 4], "m", T0, T1, slow_poll, masks=[8, 10, 12, 14])
    sum4_partials(RG, T0); sum4_partials(RU, T0)
    I("s_mov_b32 s59, 0x3d372713")
    I("s_mov_b32 s71, 0x40135761")
    for c in range(4):
        g, u = RG + c, RU + c
        bf16_round(g, g); bf16_round(u, u)
        I(f"v_mul_f32 v{T0}, v{g}, v{g}")
        I(f"v_mul_f32 v{T0}, v{T0}, v{g}")
        I(f"v_fma_f32 v{T0}, v{T0}, s59, v{g}")
        I(f"v_mul_f32 v{T0}, s71, v{T0}")
        I(f"v_exp_f32 v{T0}, -v{T0}")
        I(f"v_add_f32 v{T0}, 1.0, v{T0}")
        I(f"v_rcp_f32 v{T0}, v{T0}")
        I(f"v_mul_f32 v{T0}, v{g}, v{T0}")
        bf16_round(T0, T0)
        I(f"v_mul_f32 v{g}, v{T0}, v{u}")
    I(f"v_cvt_pk_bf16_f32 v{RU}, v{RG}, v{RG+1}"); I(f"v_cvt_pk_bf16_f32 v{RU+2}, v{RG+2}, v{RG+3}")
    I(f"v_mov_b32 v{RU+1}, s56"); I(f"v_mov_b32 v{RU+3}, s56")
    I(f"s_lshl_b32 s70, s70, 9"); I(f"s_add_u32 s70, s70, {WS_HID}")
    I("s_mov_b32 s66, -1"); I("s_mov_b32 s67, 0"); I("s_mov_b64 exec, s[66:67]")
    I(f"buffer_store_dwordx4 v[{RU}:{RU+3}], v{VX}, s[36:39], s70 offen {sfl}")
    I("s_mov_b64 exec, -1")
    stamp()
    two_tile_voff(VST, T0, 8)
    I("s_lshl_b32 s59, s6, 13"); I(f"s_add_u32 s59, s59, {WS_HID}"); I("s_add_u32 s71, s59, 4096")
    VOW, VOL = 5, 6
    I(f"v_lshrrev_b32 v{T0}, 5, v0"); I(f"v_mul_u32_u24 v{VOW}, 272, v{T0}")
    I(f"v_and_b32 v{T0}, 31, v0"); I(f"v_lshl_add_u32 v{VOW}, v{T0}, 3, v{VOW}"); I(f"v_add_u32 v{VOW}, {L_HL}, v{VOW}")
    I(f"v_and_b32 v{T0}, 7, v0"); I(f"v_mul_u32_u24 v{VOL}, 272, v{T0}")
    I(f"v_lshrrev_b32 v{T0}, 4, v0"); I(f"v_lshl_add_u32 v{VOL}, v{T0}, 4, v{VOL}"); I(f"v_add_u32 v{VOL}, {L_HL}, v{VOL}")
    R = 104
    for i in range(hid_delay): I("s_sleep 127")
    hl = [(lambda i=i: I(f"buffer_load_dwordx4 v[{R+4*i}:{R+4*i+3}], v{VX}, s[36:39], s{59 if i < 4 else 71} offen offset:{(i&3)*1024} {rfl}")) for i in range(8)]
    poll(hl, [R + 4 * i for i in range(8)], "g8", T0, T1, slow_poll, masks=[8 + 2 * i for i in range(8)])
    for i in range(8):
        I(f"v_mov_b32 v{R+4*i+1}, v{R+4*i+2}")
        I(f"ds_write_b64 v{VOW}, v[{R+4*i}:{R+4*i+1}] offset:{(i>>2)*2176 + (i&3)*544}")
    I("s_waitcnt lgkmcnt(0)")
    for ks in range(8):
        I(f"ds_read_b128 v[{X+4*ks}:{X+4*ks+3}], v{VOL} offset:{(ks>>2)*2176 + (ks&3)*64}")
    I("s_waitcnt lgkmcnt(0)")
    if late_down:
        I(f"v_mov_b32 v{T0}, {L_LAST}")
        I(f"s_mov_b32 s58, {POLL_LIMIT*64}")
        e.label("L_lwait")
        I(f"ds_read_b32 v{T1}, v{T0}")
        I("s_waitcnt lgkmcnt(0)")
        I(f"v_readfirstlane_b32 s57, v{T1}")
        I("s_cmp_lg_u32 s57, 0"); I("s_cbranch_scc1 L_lok")
        I("s_sub_u32 s58, s58, 1"); I("s_cmp_eq_u32 s58, 0"); I("s_cbranch_scc1 L_lok")
        I("s_sleep 2"); I("s_branch L_lwait")
        e.label("L_lok")
        p_dma(range(32), VO, 52, 27, 2048, L_P1, "WD")
        p_gemm_full(VTR, VAD, F0, F1, DD, X, 4, "WD", S, VMASK, T0, VST, 69)
    else:
        p_gemm_full(VTR, VAD, F0, F1, DD, X, 4, None, S, VMASK, T0, VST, 69, defer=defer_bp)
    stamp()
    stamp_flush()
    e.label("L_end")
    I("s_endpgm")

    e.raw('.section .rodata,"a"'); e.raw(".p2align 6"); e.raw(f".amdhsa_kernel {KNAME}")
    e.raw("  .amdhsa_next_free_vgpr 192"); e.raw("  .amdhsa_next_free_sgpr 102"); e.raw("  .amdhsa_accum_offset 192")
    e.raw("  .amdhsa_group_segment_fixed_size 0"); e.raw("  .amdhsa_kernarg_size 104"); e.raw("  .amdhsa_user_sgpr_count 2")
    e.raw("  .amdhsa_user_sgpr_kernarg_segment_ptr 1"); e.raw("  .amdhsa_system_sgpr_workgroup_id_x 1"); e.raw(".end_amdhsa_kernel")
    open(path, "w").write(e.text())


if __name__ == "__main__":
    names = []
    for nm, kw in eval(open("variants6.txt").read()):
        gen(nm, **kw); names.append(nm)
    print(" ".join(names))
```
